```python
import torch

def _softmax(x, axis=-1):
    return torch.softmax(x, dim=axis)
def _gelu(x):
    return torch.nn.functional.gelu(x, approximate="tanh")
def _silu(x):
    return torch.nn.functional.silu(x)
def _sigmoid(x):
    return torch.sigmoid(x)
def _layernorm(x, axis=-1, eps=1e-5):
    m = x.mean(dim=axis, keepdim=True)
    v = x.var(dim=axis, keepdim=True, unbiased=False)
    return (x - m) / torch.sqrt(v + eps)
def _scatter_add(tgt, idx, src, axis=0):
    return tgt.clone().index_add_(axis, idx, src)
def _segment_sum(src, seg, n):
    out = torch.zeros((n,) + src.shape[1:], dtype=src.dtype)
    return out.index_add_(0, seg, src)
def _pad(x, pw):
    flat = tuple(v for pair in reversed(pw) for v in pair)
    return torch.nn.functional.pad(x, flat)

kernel_name = 'gated_mix__ssm_conv_s4__glu_gated_bilinear__prompt'

def setup_inputs():

    _w = (lambda a: (lambda t: t.to(torch.bfloat16) if t.is_floating_point() else t)(torch.as_tensor(a)))
    def _A_setup():
        B, L, D, N = 1, 2048, 640, 128
        A_re = -(lambda _x: torch.exp(torch.as_tensor(_x)))((lambda *s: torch.randn(*s, dtype=torch.bfloat16) * 3.2)(D, N))
        A_im = torch.pi * (lambda *s: torch.randn(*s, dtype=torch.bfloat16) * 0.05)(D, N)
        B_re = (lambda *s: torch.randn(*s, dtype=torch.bfloat16) * 0.1)(D, N)
        B_im = (lambda *s: torch.randn(*s, dtype=torch.bfloat16) * 0.1)(D, N)
        C_re = (lambda *s: torch.randn(*s, dtype=torch.bfloat16) * 0.1)(D, N)
        C_im = (lambda *s: torch.randn(*s, dtype=torch.bfloat16) * 0.1)(D, N)
        log_dt = (lambda *s: torch.randn(*s, dtype=torch.bfloat16) * 0.05)(D) * 0.5 - 4.0
        Dskip = (lambda *s: torch.randn(*s, dtype=torch.bfloat16) * 0.05)(D)
        return {
            "u": _w((lambda *s: torch.randn(*s, dtype=torch.bfloat16) * 0.05)(B, L, D)),
            "A_re": _w(A_re),
            "A_im": _w(A_im),
            "B_re": _w(B_re),
            "B_im": _w(B_im),
            "C_re": _w(C_re),
            "C_im": _w(C_im),
            "log_dt": _w(log_dt),
            "Dskip": _w(Dskip),
        }
    _A_in = _A_setup()

    def _B_setup():
        B, S, D, F = 1, 2048, 640, 1728
        return {
            "x": _w((lambda *s: torch.randn(*s, dtype=torch.bfloat16) * 0.05)(B, S, D)),
            "w_gate": _w((lambda *s: torch.randn(*s, dtype=torch.bfloat16) * 0.8)(D, F) * (D ** -0.5)),
            "w_up": _w((lambda *s: torch.randn(*s, dtype=torch.bfloat16) * 0.8)(D, F) * (D ** -0.5)),
            "w_down": _w((lambda *s: torch.randn(*s, dtype=torch.bfloat16) * 0.8)(F, D) * (F ** -0.5)),
        }
    _B_in = _B_setup()

    return {
        "A_u": _A_in["u"],
        "A_A_re": _A_in["A_re"],
        "A_A_im": _A_in["A_im"],
        "A_B_re": _A_in["B_re"],
        "A_B_im": _A_in["B_im"],
        "A_C_re": _A_in["C_re"],
        "A_C_im": _A_in["C_im"],
        "A_log_dt": _A_in["log_dt"],
        "A_Dskip": _A_in["Dskip"],
        "B_x": _B_in["x"],
        "B_w_gate": _B_in["w_gate"],
        "B_w_up": _B_in["w_up"],
        "B_w_down": _B_in["w_down"],
        "gate_w": _w((lambda *s: torch.randn(*s, dtype=torch.bfloat16) * 0.05)(640) * 16.0),
    }

def reference(A_u, A_A_re, A_A_im, A_B_re, A_B_im, A_C_re, A_C_im, A_log_dt, A_Dskip, B_x, B_w_gate, B_w_up, B_w_down, gate_w):
    def _A_ref(u, A_re, A_im, B_re, B_im, C_re, C_im, log_dt, Dskip):
        Bsz, L, D = u.shape
        dt = torch.exp(log_dt)[:, None]
        A = A_re + 1j * A_im
        Bc = B_re + 1j * B_im
        Cc = C_re + 1j * C_im
        logdA = dt * A
        dB = dt * Bc
        l = (lambda x, dt: x.to(dt))(torch.arange(L), A_re.dtype)
        P = torch.exp(logdA[:, :, None] * l[None, None, :])
        K = torch.einsum("dn,dnl,dn->dl", Cc, P, dB).real
        L2 = 2 * L
        Kp = _pad(K, ((0, 0), (0, L)))
        up = (lambda x, *d: x.permute(*d))(u, 0, 2, 1)
        up = _pad(up, ((0, 0), (0, 0), (0, L)))
        Kf = (lambda x, axes=(-2,-1): torch.fft.rfft2(x.float(), dim=axes))(Kp[:, None, :], axes=(-2, -1))
        Uf = (lambda x, axes=(-2,-1): torch.fft.rfft2(x.float(), dim=axes))(up[:, :, None, :], axes=(-2, -1))
        Yf = Uf * Kf[None, :, :, :]
        y = (lambda x, s, axes=(-2,-1): torch.fft.irfft2(x, s=s, dim=axes).to(torch.bfloat16))(Yf, (1, L2), axes=(-2, -1))[:, :, 0, :L]
        y = (lambda x, *d: x.permute(*d))(y, 0, 2, 1) + u * Dskip[None, None, :]
        return y

    def _B_ref(x, w_gate, w_up, w_down):
        g = torch.einsum("bsd,df->bsf", x, w_gate)
        u = torch.einsum("bsd,df->bsf", x, w_up)
        h = g * u
        return torch.einsum("bsf,fd->bsd", h, w_down)

    x = A_u
    g = _sigmoid((x * gate_w).sum(-1, keepdims=True))
    a = _A_ref(x, A_A_re, A_A_im, A_B_re, A_B_im, A_C_re, A_C_im, A_log_dt, A_Dskip)
    b = _B_ref(x, B_w_gate, B_w_up, B_w_down)
    return g * a + (1 - g) * b
```

```python
import re

class Op:
    __slots__ = ("txt", "kind", "tag", "arg")
    def __init__(self, txt, kind="i", tag=None, arg=None):
        self.txt = txt; self.kind = kind; self.tag = tag; self.arg = arg
    def __repr__(self): return f"Op({self.kind},{self.txt},{self.tag})"

class S:
    def __init__(self): self.ops = []
    def __call__(self, txt):
        for l in txt.split("\n"):
            l = l.strip()
            if not l: continue
            self.ops.append(Op(l))
        return self
    def vm(self, txt, tag=None):
        self.ops.append(Op(txt, "vm", tag)); return self
    def lg(self, txt, tag=None):
        self.ops.append(Op(txt, "lg", tag)); return self
    def unc(self, txt):
        for l in txt.split("\n"):
            if l.strip(): self.ops.append(Op(l.strip(), "unc"))
        return self
    def wvm(self, tag, extra=0):
        self.ops.append(Op("", "wvm", tag, extra)); return self
    def wlg(self, tag):
        self.ops.append(Op("", "wlg", tag)); return self
    def win(self, n):
        self.ops.append(Op("", "win", None, n)); return self
    def reset(self):
        self.ops.append(Op("", "reset")); return self
    def seed(self, tags):
        self.ops.append(Op("", "seed", None, list(tags))); return self
    def label(self, name):
        self.ops.append(Op(name + ":", "label", name)); return self
    def atom(self, other):
        self.ops.append(Op("", "group", None, list(other.ops))); return self
    def add(self, other):
        self.ops.extend(other.ops); return self
    def __len__(self): return len(self.ops)

def flatten(ops):
    out = []
    for o in ops:
        if o.kind == "group": out.extend(flatten(o.arg))
        else: out.append(o)
    return out

def interleave(main, side, start=0, end=None):
    r = S()
    m = main.ops; s = side.ops
    n = len(m); k = len(s)
    if n == 0:
        r.ops = list(s); return r
    end = k if end is None else end
    pos = [start + (end - start) * i // n for i in range(n)]
    mi = 0
    for i in range(k + 1):
        while mi < n and pos[mi] <= i:
            r.ops.append(m[mi]); mi += 1
        if i < k: r.ops.append(s[i])
    while mi < n:
        r.ops.append(m[mi]); mi += 1
    return r

def is_vm(txt): return re.match(r"(buffer_|global_)", txt) is not None
def is_lg(txt): return txt.startswith("ds_")

def resolve(ops):
    ops = flatten(ops)
    out = []; vm = []; lg = []
    for o in ops:
        if o.kind in ("i", "vm", "lg"):
            t = o.txt
            if is_vm(t): vm.append(o.tag)
            elif is_lg(t): lg.append(o.tag)
            elif t.startswith("s_waitcnt"):
                m = re.search(r"vmcnt\((\d+)\)", t)
                if m:
                    n = int(m.group(1)); vm = vm[len(vm) - n:] if n and n < len(vm) else (vm if n else [])
                m = re.search(r"lgkmcnt\((\d+)\)", t)
                if m:
                    n = int(m.group(1)); lg = lg[len(lg) - n:] if n and n < len(lg) else (lg if n else [])
            out.append(t)
        elif o.kind in ("label", "unc"):
            out.append(o.txt)
        elif o.kind == "reset":
            vm = []; lg = []
        elif o.kind == "seed":
            vm = list(o.arg); lg = []
        elif o.kind == "seedvm":
            vm = list(o.arg)
        elif o.kind == "wvm":
            idx = [i for i, g in enumerate(vm) if g == o.tag]
            if not idx: continue
            n = len(vm) - 1 - idx[-1]
            assert n <= 63, f"vmcnt overflow {n} for {o.tag}"
            out.append(f"s_waitcnt vmcnt({n})"); vm = vm[len(vm) - n:] if n else []
        elif o.kind == "win":
            if len(vm) > o.arg:
                out.append(f"s_waitcnt vmcnt({o.arg})"); vm = vm[len(vm) - o.arg:] if o.arg else []
        elif o.kind == "wlg":
            idx = [i for i, g in enumerate(lg) if g == o.tag]
            if not idx: continue
            n = len(lg) - 1 - idx[-1]
            if n > 15: n = 15
            out.append(f"s_waitcnt lgkmcnt({n})"); lg = lg[len(lg) - n:] if n else []
        else:
            raise ValueError(o.kind)
    return out

TRANS = ("v_exp_f32", "v_log_f32", "v_rcp_f32", "v_rsq_f32", "v_sqrt_f32", "v_sin_f32", "v_cos_f32")
def regs(tok, p):
    tok = tok.strip()
    neg = tok.lstrip("-").strip("|")
    m = re.fullmatch(p + r"(\d+)", neg)
    if m: return {int(m.group(1))}
    m = re.fullmatch(p + r"\[(\d+):(\d+)\]", neg)
    if m: return set(range(int(m.group(1)), int(m.group(2)) + 1))
    return set()
def sregs(tok):
    t = tok.strip()
    if t == "vcc": return {"vcc"}
    if t in ("vcc_lo", "vcc_hi"): return {"vcc"}
    if t == "m0": return {"m0"}
    if t == "exec": return {"exec"}
    return regs(t, "s")

class Info:
    pass
def parse(txt):
    I = Info(); I.txt = txt
    t = txt.split(";")[0].strip()
    I.states = 1
    I.vd = set(); I.vs = set(); I.sd = set(); I.ss = set(); I.cls = "other"; I.mC = set(); I.mAB = set(); I.passes = 0
    I.store_data = set(); I.dma = False; I.dpp = False
    if t.endswith(":") or not t or t.startswith("."):
        I.cls = "label"; I.states = 0; return I
    parts = t.split(None, 1); op = parts[0]; I.op = op
    rest = parts[1] if len(parts) > 1 else ""
    toks = [x.strip() for x in rest.split(",")]
    mods = ""
    if toks:
        sp = toks[-1].split()
        if sp:
            toks[-1] = sp[0]; mods = " ".join(sp[1:])
    if op == "s_nop":
        I.cls = "nop"; I.states = int(toks[0], 0) + 1; return I
    if op.startswith("v_mfma"):
        I.cls = "mfma"; I.vd = regs(toks[0], "v"); I.mAB = regs(toks[1], "v") | regs(toks[2], "v"); I.mC = regs(toks[3], "v")
        I.vs = I.mAB | I.mC; I.passes = 8 if "32x32" in op else 4; return I
    if op.startswith("v_"):
        I.cls = "valu"; I.trans = op.replace("_e32", "").replace("_e64", "") in TRANS
        I.dpp = "dpp" in op or "row_" in mods or "quad_perm" in mods
        if op.startswith("v_cmp"):
            I.sd = sregs(toks[0]); src = toks[1:]
        elif op.startswith("v_readfirstlane") or op.startswith("v_readlane"):
            I.sd = sregs(toks[0]); src = toks[1:]
        elif op.startswith("v_permlane") and "swap" in op:
            I.vd = regs(toks[0], "v") | regs(toks[1], "v"); src = toks
        elif re.match(r"v_(add|sub|subrev)_co_u32|v_(addc|subb)_co_u32", op):
            I.vd = regs(toks[0], "v"); I.sd = sregs(toks[1]); src = toks[2:]
        else:
            I.vd = regs(toks[0], "v"); src = toks[1:]
            if op.startswith("v_fmac") or op.startswith("v_mac") or op.startswith("v_dot2c") or op.startswith("v_writelane") or I.dpp:
                src = toks
        for x in src:
            I.vs |= regs(x, "v"); I.ss |= sregs(x)
        if op.startswith("v_cndmask") and len(toks) == 3: I.ss.add("vcc")
        return I
    if op.startswith("ds_"):
        I.cls = "ds"
        if "read" in op or "rtn" in op or "permute" in op or "swizzle" in op:
            I.vd = regs(toks[0], "v"); src = toks[1:]
        else: src = toks
        for x in src: I.vs |= regs(x, "v")
        return I
    if op.startswith("buffer_") or op.startswith("global_"):
        I.cls = "vmem"; I.dma = " lds" in (" " + mods)
        if "load" in op and not I.dma:
            I.vd = regs(toks[0], "v"); src = toks[1:]
        elif "atomic" in op and "sc0" in mods:
            I.vd = regs(toks[0], "v"); src = toks
        else: src = toks
        for x in src:
            I.vs |= regs(x, "v"); I.ss |= sregs(x)
        if "store" in op and ("x4" in op or "x3" in op):
            I.store_data = regs(toks[0], "v") if op.startswith("buffer_") else regs(toks[1], "v")
        return I
    if op.startswith("s_"):
        I.cls = "salu"
        if op.startswith("s_cmp") or op.startswith("s_cbranch") or op in ("s_branch", "s_barrier", "s_waitcnt", "s_endpgm", "s_setprio", "s_sleep", "s_bitcmp1_b32", "s_bitcmp0_b32"):
            src = toks
        else:
            I.sd = sregs(toks[0]); src = toks[1:]
            if "saveexec" in op: I.sd |= {"exec"}
        for x in src: I.ss |= sregs(x)
        return I
    raise ValueError("cannot parse: " + txt)

def need(p, c):
    n = 0
    if p.cls == "valu":
        if c.cls == "mfma" and (p.vd & c.vs): n = max(n, 2)
        if c.cls == "valu":
            if getattr(p, "trans", False) and not getattr(c, "trans", False) and (p.vd & c.vs): n = max(n, 1)
            if getattr(p, "trans", False) and getattr(c, "trans", False) and (p.vd & c.vs): n = max(n, 1)
            if (p.sd & c.ss):
                n = max(n, 4 if c.op.startswith(("v_readlane", "v_writelane")) else 2)
            if c.op.startswith(("v_readfirstlane", "v_readlane")) and (p.vd & c.vs): n = max(n, 1)
            if c.op.startswith("v_permlane") and (p.vd & c.vs): n = max(n, 2)
            if c.dpp and (p.vd & c.vs): n = max(n, 2)
            if ("sdwa" in p.txt or ("op_sel" in p.txt and not re.match(r"v_pk_(mul|fma|add)_f32", p.op))) and (p.vd & (c.vs | c.vd)): n = max(n, 1)
        if c.cls == "vmem" and (p.sd & c.ss): n = max(n, 5)
        if c.cls == "salu" and (p.sd & c.ss): n = max(n, 1)
    if p.cls == "mfma":
        big = p.passes == 8
        if c.cls == "mfma":
            if p.vd & c.mAB: n = max(n, 12 if big else 8)
            if (p.vd & c.mC) and not (p.vd == c.mC and p.passes == c.passes): n = max(n, 10 if big else 6)
            if (p.vd & c.vd) and not (p.vd == c.mC and p.passes == c.passes): n = max(n, 10 if big else 6)
        elif c.cls in ("valu", "ds", "vmem"):
            if p.vd & (c.vs | c.vd): n = max(n, 12 if big else 8)
            if c.cls == "valu" and (p.mC & c.vd): n = max(n, 7 if big else 3)
    if p.cls == "vmem" and p.store_data:
        if c.cls == "valu" and (p.store_data & c.vd): n = max(n, 2)
        elif c.cls in ("ds", "vmem", "mfma") and (p.store_data & c.vd): n = max(n, 1)
    if p.cls == "salu" and "m0" in p.sd and c.cls == "vmem" and c.dma: n = max(n, 1)
    if p.cls == "salu" and "m0" in p.sd and c.cls == "ds" and "addtid" in c.op: n = max(n, 1)
    return n

def fix_hazards(lines, verbose=False):
    out = []; infos = []; added = 0
    for l in lines:
        c = parse(l)
        if c.cls != "label":
            dist = 0; req = 0
            for p in reversed(infos):
                if dist >= 12: break
                if p.cls == "salu" and p.op in ("s_branch", "s_endpgm"): break
                k = need(p, c) if p.cls != "label" else 0
                if k > dist: req = max(req, k - dist)
                dist += p.states
            if req:
                added += 1
                if verbose: print("pad", req, "before", l)
                nop = f"s_nop {req - 1}"
                out.append(nop); infos.append(parse(nop))
        out.append(l); infos.append(c)
    lab = {i.txt[:-1]: k for k, i in enumerate(infos) if i.cls == "label" and i.txt.endswith(":")}
    probs = []
    for k, i in enumerate(infos):
        if i.cls == "salu" and (i.op.startswith("s_cbranch") or i.op == "s_branch"):
            tgt = i.txt.split()[1]
            if tgt not in lab: continue
            d0 = 0; j = lab[tgt]
            while j < len(infos) and d0 < 12:
                c = infos[j]
                if c.cls != "label":
                    dist = d0; q = k
                    while q >= 0 and dist < 12:
                        p = infos[q]
                        if p.cls != "label":
                            kk = need(p, c)
                            if kk > dist: probs.append((p.txt, c.txt, kk, dist))
                        dist += p.states; q -= 1
                    d0 += c.states
                    if c.cls == "salu" and c.op in ("s_branch", "s_endpgm"): break
                j += 1
    for p in probs: print("BRANCH-EDGE HAZARD:", p)
    assert not probs
    return out
```

```python
import sys, os, math, struct
sys.path.insert(0, os.path.dirname(os.path.abspath(__file__)))
from asmlib import S, interleave, resolve, fix_hazards, flatten

NAME = "gated_mix__ssm_conv_s4__glu_gated_bilinear__prompt"
KN = NAME + "_kernel"

T1F, T2F, AF, WS_G, HF = 0, 5120, 7680, 10240, 18432
WS_UT = 0x10000
WS_AT = 0x290000
ATP = 4352
WS_WD = 0x540000
WS_H = 0x760000
WS_STAMP = 0xF00000
WS_BYTES = 0x2000000
OOB = 0x7ff00000
SX, SWG, SWU, SWS, SOUT, SWD, SDBG, SGW = 4, 8, 12, 16, 20, 24, 28, 48
P_ARE, P_AIM, P_BRE, P_BIM, P_CRE, P_CIM, P_LDT, P_DSK = 32, 34, 36, 38, 40, 42, 44, 46
sWAVE = 3
sFT, sROW0, sLARGE, sIDX, sHW, sRB, sCT, sR, sT1S, sT1SL, sQ16, sU2 = range(52, 64)
sFJ = 64
def srd(n): return f"s[{n}:{n+3}]"
def sp(n): return f"s[{n}:{n+1}]"
def vr(a, n): return f"v[{a}:{a+n-1}]"
def fbits(x): return "0x%08x" % struct.unpack("<I", struct.pack("<f", x))[0]
LOG2E = 1.4426950408889634
vL16 = 1

LDS_BYTES = 163840
class Cfg:
    stamps = 0
    sh = 0
    t2w = 0
    l2 = 0
    win = 8
    win2 = 8
    hp = 0
    hf = 3
    lw = 8
    lb = 4
    npre = 7
    ncl = 4
    hq = 20
    m9 = 10
    mp = 66
    pk = 1
    k0 = 55
    k1 = 95
    j0 = 5
    j1 = 50
    gs = 2
    s0n = 6
    lp = 99
    t2q = 40
    prio = 3
    prk = 1
    prg = 0
    slp = 4
    wt = [3, 3, 3, 3, 4, 4, 4]
    e0 = 0
    e1 = 100
    n8 = 6; n9 = 12; l8 = 8; l9 = 16
    ngc = 35; ng2 = 50
    rot = 1
    s0w = 0
    l0w = 0
    kc = 100
    ms = 2
    kw0 = 50
    hA = 1
    hop = 1
    gS = 4096; gL = 4096; gG = 4096
    cw = 1
    tch = 0
    ts0 = 2
    tp0 = -1; tp1 = 20; tp2 = 50; tp3 = 75; tp4 = 90
cfg = Cfg()

VST = 7
def stamp(a, i):
    if not cfg.stamps: return
    a(f"s_memtime s[94:95]\ns_waitcnt lgkmcnt(0)\nv_writelane_b32 v{VST}, s94, {i}")
def stamp_rt(a, i):
    if not cfg.stamps: return
    a(f"s_memrealtime s[94:95]\ns_waitcnt lgkmcnt(0)\nv_writelane_b32 v{VST}, s94, {i}")
def stamp_flush(a):
    if not cfg.stamps: return
    a(f"s_lshl_b32 s96, s2, 3\ns_add_u32 s96, s96, s{sWAVE}\ns_lshl_b32 s96, s96, 8\ns_add_u32 s96, s96, {WS_STAMP}")
    a(f"v_and_b32 v6, 63, v0\nv_lshlrev_b32 v6, 2, v6")
    a(f"buffer_store_dword v{VST}, v6, {srd(SWS)}, s96 offen")

uid = [0]
def newlab(p):
    uid[0] += 1; return f"L_{p}_{uid[0]}"
def mod5(a, s): a(f"s_cmp_ge_u32 s{s}, 5\ns_cselect_b32 s93, 5, 0\ns_sub_u32 s{s}, s{s}, s93")

def region(a, name): a.label(f"R_{name}")
def map1(a, t):
    a(f"s_and_b32 s82, s2, 1\ns_lshr_b32 s83, s80, 1\ns_lshl_b32 s{sROW0}, s82, 10\ns_mul_i32 s84, s83, 5\ns_mov_b32 s{sLARGE}, 1")
    a(f"s_cmp_lt_u32 s81, 25\ns_cbranch_scc0 L_map_k2{t}")
    a(f"s_sub_u32 s85, s81, 20\ns_mov_b32 s88, s85\ns_mul_i32 s86, s85, 192\ns_cbranch_scc0 L_map_col{t}")
    a(f"s_lshr_b32 s85, s81, 2\ns_and_b32 s86, s81, 3\ns_cmp_ge_u32 s86, s85\ns_cselect_b32 s87, 0x100, 0\ns_addc_u32 s88, s86, 0")
    a(f"s_mul_i32 s86, s86, 192\ns_add_u32 s86, s86, s87\ns_mov_b32 s{sLARGE}, 0")
    a.label(f"L_map_col{t}")
    a(f"s_add_u32 s{sFT}, s84, s85\ns_branch L_map_done{t}")
    a.label(f"L_map_k2{t}")
    a(f"s_mul_i32 s84, s83, 7\ns_add_u32 s84, s84, s81\ns_sub_u32 s84, s84, 25\ns_lshr_b32 s85, s84, 2\ns_add_u32 s{sFT}, s85, 20")
    a(f"s_and_b32 s88, s84, 3\ns_lshl_b32 s86, s88, 8")
    a.label(f"L_map_done{t}")
    a(f"s_add_u32 s{sROW0}, s{sROW0}, s86\ns_xor_b32 s84, s82, s83\ns_and_b32 s84, s84, 1\ns_mul_i32 s84, s84, 5")
    if cfg.rot == 1:
        a(f"s_add_u32 s{sR}, s85, s88"); mod5(a, sR); a(f"s_add_u32 s{sR}, s{sR}, s84")
    else: a(f"s_mov_b32 s{sR}, s84")
    a(f"s_mov_b32 s{SX+2}, 2621440\ns_mov_b32 s{SX+3}, 0x20000\ns_mov_b32 s{SWG+2}, 2211840\ns_mov_b32 s{SWG+3}, 0x20000")
    a(f"s_mov_b64 {sp(SWU+2)}, {sp(SWG+2)}\ns_movk_i32 s{SGW+2}, 1280\ns_mov_b32 s{SGW+3}, s{SX+3}")
def par_loads(a, t):
    a(f"s_cmp_ge_u32 s81, 20\ns_waitcnt lgkmcnt(0)\ns_cbranch_scc1 L_nopar{t}")
    kgen_issue(a)
    a.label(f"L_nopar{t}")
def prologue(a):
    region(a, "P")
    if cfg.stamps: a("s_memrealtime s[98:99]\ns_memtime s[96:97]")
    a("s_cmp_ge_u32 s2, 256\ns_cbranch_scc1 L_end")
    a("s_load_dwordx16 s[32:47], s[0:1], 8")
    for d, o in ((SX, 0), (SWG, 80), (SWU, 88), (SGW, 104), (SWD, 96), (SWS, 128), (SDBG, 120), (SOUT, 112)):
        a(f"s_load_dwordx2 {sp(d)}, s[0:1], {o}")
    a(f"v_lshrrev_b32 v1, 6, v0\nv_and_b32 v2, 63, v0\nv_readfirstlane_b32 s{sWAVE}, v1\nv_lshlrev_b32 v{vL16}, 4, v2")
    a(f"s_lshr_b32 s81, s2, 3\ns_and_b32 s80, s2, 7\ns_mul_i32 s{sIDX}, s80, 20\ns_add_u32 s{sIDX}, s{sIDX}, s81\ns_and_b32 s{sHW}, s{sWAVE}, 3")
    if cfg.stamps: a(f"v_mov_b32 v{VST}, 0")
    a(f"s_cmp_ge_u32 s{sWAVE}, 4\ns_cbranch_scc1 L_h0")
    if cfg.cw:
        a(f"s_cmp_lg_u32 s{sWAVE}, 3\ns_cbranch_scc1 L_ncw\ns_getpc_b64 s[82:83]")
        a.label("L_pc")
        a("s_mul_i32 s84, s81, 52\ns_lshr_b32 s84, s84, 8\ns_mul_i32 s84, s84, 5\ns_sub_u32 s84, s81, s84\ns_lshl_b32 s84, s84, 13\nv_lshl_add_u32 v3, v2, 7, s84")
        a("v_min_u32 v3, L_end-L_pc, v3\nv_mov_b32 v5, s83\nv_add_co_u32 v4, vcc, s82, v3\nv_addc_co_u32 v5, vcc, 0, v5, vcc")
        a.unc("global_load_dword v63, v[4:5], off")
        a.label("L_ncw")
    kgen_addr(a, 0)
    par_loads(a, "c")
    a("s_branch L_comp")
    a.label("L_h0")
    map1(a, "h")
    loader_setup(a)
    kgen_addr(a, 1)
    par_loads(a, "h")
    if cfg.s0w and cfg.l0w: return
    if cfg.s0w or cfg.l0w: a(f"s_cmp_eq_u32 s{sLARGE}, {1 if cfg.l0w else 0}\ns_cbranch_scc1 L_nst0")
    stage0(a)
    a.label("L_nst0")
def map_ws(a): a(f"s_mov_b32 s{SWS+2}, {WS_BYTES}\ns_mov_b32 s{SWS+3}, 0x20000\ns_movk_i32 s{SDBG+2}, 256\ns_mov_b32 s{SDBG+3}, 0x20000")
def map2(a, ws=True):
    if cfg.stamps: a(f"v_writelane_b32 v{VST}, s98, 0\nv_writelane_b32 v{VST}, s96, 1")
    a(f"s_mov_b64 {sp(SOUT+2)}, {sp(SX+2)}\ns_mov_b64 {sp(SWD+2)}, {sp(SWG+2)}")
    if ws: map_ws(a)
    a(f"s_lshr_b32 s84, s81, 3\ns_lshl_b32 s{sRB}, s80, 2\ns_add_u32 s{sRB}, s{sRB}, s84\ns_and_b32 s{sCT}, s81, 7")
    a(f"s_lshl_b32 s{sU2}, s81, 3\ns_add_u32 s{sU2}, s{sU2}, s80\ns_lshl_b32 s{sU2}, s{sU2}, 2\ns_add_u32 s{sU2}, s{sU2}, s{sHW}")
    if cfg.rot == 1:
        a(f"s_sub_u32 s{sT1S}, s85, s88\ns_add_u32 s{sT1S}, s{sT1S}, 5"); mod5(a, sT1S)
    else: a(f"s_mov_b32 s{sT1S}, s85")
    a(f"s_mul_i32 s{sT1SL}, s82, 5\ns_add_u32 s{sT1SL}, s{sT1SL}, s88\ns_lshl_b32 s{sT1SL}, s{sT1SL}, 1\ns_lshr_b32 s86, s83, 1\ns_add_u32 s{sT1SL}, s{sT1SL}, s86")
    a(f"s_lshl_b32 s86, s85, 6\ns_sub_u32 s86, s86, 32\ns_cmp_eq_u32 s83, 0\ns_cselect_b32 s{sQ16}, s86, -1\ns_lshl_b32 s86, s85, 5")
    a(f"s_cmp_lt_u32 s81, 25\ns_cselect_b32 s{sT1S}, s{sT1S}, 63\ns_cselect_b32 s{sQ16}, s{sQ16}, s86\ns_cselect_b32 s{sT1SL}, s{sT1SL}, 0")
def hops(a, name):
    if not cfg.hop: return
    a("s_mov_b64 exec, 0")
    for w in range(3): a(f"s_cmp_eq_u32 s{sWAVE}, {w}\ns_cbranch_scc1 H_{name}{w}")
    a(f"s_branch H_{name}3")
    a.label(f"L_back{name}")
    a("s_mov_b64 exec, -1")
def stop(a): a.label(newlab("STOP"))

def col_order(a, scale, base):
    a(f"s_and_b32 s80, s{sRB}, 15\ns_mul_i32 s80, s80, 11\ns_lshr_b32 s80, s80, 5\ns_min_u32 s80, s80, 4")
    for j in range(5):
        a(f"s_add_u32 s81, s80, {1+j}"); mod5(a, 81)
        a(f"s_mul_i32 s81, s81, {scale}\ns_add_u32 s{sFJ+j}, s81, s{base}")

SPIN = 40000
def spin(a, loads, test):
    L = newlab("poll"); D = newlab("pdone")
    a("s_mov_b32 s90, 0")
    a.label(L)
    for l in loads: a.unc(l)
    a.unc("s_waitcnt vmcnt(0)")
    a(test)
    a(f"s_cbranch_scc0 {D}")
    if cfg.slp: a(f"s_sleep {cfg.slp}")
    a(f"s_add_u32 s90, s90, 1\ns_cmp_lt_u32 s90, {SPIN}\ns_cbranch_scc1 {L}")
    a.label(D)
def check(a, tag, loads, test):
    D = newlab("ok"); g = S()
    g.wvm(tag); g(test); g(f"s_cbranch_scc0 {D}")
    spin(g, loads, test)
    g.label(D); a.atom(g)
def t_all(v): return f"v_cmp_ne_u32 vcc, 1, v{v}\ns_or_b32 s92, vcc_lo, vcc_hi"
sCLR = 32
def clear_stores(a):
    D = newlab("nclr"); n = 40 // cfg.ncl
    a(f"s_sub_u32 s82, s81, 20\ns_add_u32 s83, s80, s{sWAVE}\ns_cmp_eq_u32 s83, 0\ns_cselect_b32 s{sCLR}, s82, 63")
    a(f"s_cmp_lt_u32 s{sCLR}, {cfg.ncl}\ns_cbranch_scc0 {D}")
    a(f"v_mov_b64 v[16:17], 0\nv_mov_b64 v[18:19], 0\ns_mul_i32 s82, s{sCLR}, {n*1024}")
    for i in range(n):
        if i and i % 4 == 0: a("s_add_u32 s82, s82, 4096")
        a.unc(f"buffer_store_dwordx4 v[16:19], v{vL16}, {srd(SWS)}, s82 offen offset:{(i&3)*1024} sc1")
    a.label(D)
def signal_cleared(a):
    D = newlab("sig")
    a(f"s_cmp_lt_u32 s{sCLR}, {cfg.ncl}\ns_cbranch_scc0 {D}")
    a(f"s_waitcnt vmcnt(0)\nv_mov_b32 v18, 0\nv_mov_b32 v19, 1\ns_lshl_b32 s80, s{sCLR}, 2\ns_mov_b64 exec, 1")
    a.unc(f"buffer_store_dword v19, v18, {srd(SDBG)}, s80 offen sc1")
    a("s_mov_b64 exec, -1")
    a.label(D)

ACC1 = 128; CACC = 224
F_A = (64, 88); F_B = (72, 96)
vA1 = 8; vB1 = 9
vHF, vCA0, vCB0, vHS, vAS = 13, 14, 15, 16, 17
sHA = 76
sT1FL, sT1FS = 44, 45
HC = 24
def g1_reads(nt, ks, buf):
    ag = F_A[buf]; bb = F_B[buf]; o = ks * 2048
    seq = [f"ds_read_b64_tr_b16 {vr(ag,2)}, v{vA1} offset:{o}",
           f"ds_read_b64_tr_b16 {vr(ag+2,2)}, v{vA1} offset:{o+512}",
           f"ds_read_b128 {vr(bb,4)}, v{vB1+ks}",
           f"ds_read_b64_tr_b16 {vr(ag+4,2)}, v{vA1} offset:{o+8192}",
           f"ds_read_b64_tr_b16 {vr(ag+6,2)}, v{vA1} offset:{o+8192+512}"]
    seq += [f"ds_read_b128 {vr(bb+4*t,4)}, v{vB1+ks} offset:{4096*t}" for t in range(1, nt)]
    return seq
def g1_mfmas(nt, buf, zero=False):
    ag = F_A[buf]; bb = F_B[buf]; m = []
    for t in range(nt):
        for gu in range(2):
            c = ACC1 + 32 * t + 16 * gu
            m.append(f"v_mfma_f32_32x32x16_bf16 {vr(c,16)}, {vr(ag+4*gu,4)}, {vr(bb+4*t,4)}, {0 if zero else vr(c,16)}")
    return m
def phase(a, mf, rd, extra=()):
    rd = list(rd); extra = list(extra)
    for i, m in enumerate(mf):
        a(m)
        for _ in range(2):
            if rd: a(rd.pop(0))
            elif extra and i >= 3: a(extra.pop(0))
    for x in rd + extra: a(x)

KOFF = 97088; KST = 16704; KCH = 4160; UOFF = 61440; UCH = 4608
def g1_setup(a, nt):
    rw = 32 * nt; slot = (2 * rw) * 128 + 16384; xb = 2 * rw * 128
    a(f"s_lshr_b32 s70, s{sWAVE}, 1\ns_and_b32 s71, s{sWAVE}, 1")
    a(f"v_and_b32 v3, 31, v2\nv_lshrrev_b32 v4, 5, v2")
    a(f"v_lshrrev_b32 v5, 1, v3\nv_and_b32 v5, 7, v5\nv_xor_b32 v5, v5, v4\nv_lshlrev_b32 v5, 4, v5")
    a(f"s_mul_i32 s80, s70, {rw*128}\nv_lshlrev_b32 v3, 7, v3\nv_add3_u32 v{vB1}, v3, v5, s80")
    for ks in range(1, 4): a(f"v_xor_b32 v{vB1+ks}, {32*ks}, v{vB1}")
    a(f"v_lshlrev_b32 v3, 3, v4\nv_bfe_u32 v5, v2, 2, 2\nv_add_u32 v3, v3, v5\nv_lshlrev_b32 v3, 7, v3")
    a(f"v_bfe_u32 v5, v2, 3, 1\nv_xor_b32 v5, s71, v5\nv_lshlrev_b32 v5, 6, v5\nv_add_u32 v3, v3, v5")
    a(f"v_bfe_u32 v5, v2, 4, 1\nv_lshlrev_b32 v5, 5, v5\nv_add_u32 v3, v3, v5\nv_and_b32 v5, 3, v2\nv_lshlrev_b32 v5, 3, v5")
    a(f"s_mov_b32 s80, {xb}\nv_add3_u32 v{vA1}, v3, v5, s80")
    if nt == 3:
        for i in range(0, 32, 2): a(f"v_mov_b64 {vr(CACC+i,2)}, 0")
    a(f"s_mov_b32 s72, 0\ns_mov_b32 s73, 1\ns_mov_b32 s74, {slot}\ns_mov_b32 s75, {slot}")
    a(f"s_add_u32 s85, s{sR}, s{sT1S}\ns_cmp_ge_u32 s85, 10\ns_cselect_b32 s86, 10, 0\ns_sub_u32 s85, s85, s86\ns_lshl_b32 s85, s85, 2\ns_add_u32 s85, s85, s{sHW}")
    a(f"s_lshl_b32 s85, s85, 7\ns_lshl_b32 s86, s{sT1SL}, 2\ns_add_u32 s85, s85, s86\ns_add_u32 s{sT1FL}, s85, {T1F}\ns_add_u32 s{sT1FS}, s{sT1S}, {3 if nt == 4 and cfg.l2 else 2}")
    a(f"v_bfe_u32 v3, v2, 4, 1\nv_lshlrev_b32 v3, 10, v3\nv_lshrrev_b32 v4, 5, v2\nv_lshlrev_b32 v4, 9, v4\nv_and_b32 v5, 15, v2\nv_lshlrev_b32 v5, 4, v5\nv_add3_u32 v{vHS}, v3, v4, v5")
    a(f"s_lshl_b32 s80, s{sFT}, 1\ns_add_u32 s80, s80, s71\ns_lshl_b32 s81, s80, 12\ns_add_u32 s81, s81, {WS_H}")
    a(f"s_mul_i32 s82, s70, {nt}\ns_lshr_b32 s83, s{sROW0}, 5\ns_add_u32 s82, s82, s83")
    a(f"s_lshl_b32 s84, s82, 8\ns_lshl_b32 s80, s80, 2\ns_add_u32 s84, s84, s80\ns_add_u32 s{sT1SL}, s84, {HF}")
    for t in range(nt):
        a(f"s_lshr_b32 s83, s82, 1\ns_mul_i32 s83, s83, 221184\ns_and_b32 s84, s82, 1\ns_lshl_b32 s84, s84, 11\ns_add_u32 s83, s83, s84\ns_add_u32 s{sHA+t}, s83, s81\ns_add_u32 s82, s82, 1")
    a(f"s_mul_i32 s69, s{sRB}, 221184\ns_lshl_b32 s80, s70, 12\ns_add_u32 s69, s69, s80\ns_lshl_b32 s80, s71, 11\ns_add_u32 s69, s69, s80\ns_add_u32 s69, s69, {WS_H}")
    col_order(a, 8192, 69)
    a(f"s_add_u32 s80, s80, 1\nv_lshrrev_b32 v3, 2, v2\nv_add_u32 v3, s80, v3\nv_subrev_u32 v4, 5, v3\nv_cmp_gt_u32 vcc, 5, v3\nv_cndmask_b32 v3, v4, v3, vcc")
    a(f"v_and_b32 v4, 3, v2\nv_mad_u32_u24 v3, v4, 5, v3\nv_min_u32 v4, 26, v2\nv_cmp_gt_u32 vcc, 20, v2\nv_cndmask_b32 v3, v4, v3, vcc\nv_lshlrev_b32 v3, 3, v3")
    a(f"s_lshl_b32 s80, s{sRB}, 1\ns_add_u32 s80, s80, s71\ns_lshl_b32 s80, s80, 8\ns_lshl_b32 s81, s70, 2\ns_add_u32 s80, s80, s81\ns_add_u32 s80, s80, {HF}\nv_add_u32 v{vHF}, s80, v3")
    if nt == 3:
        a(f"s_mul_i32 s80, s{sWAVE}, {KCH}\ns_add_u32 s80, s80, {KOFF+472-448}\ns_mul_i32 s81, s{sWAVE}, {UCH}\ns_add_u32 s81, s81, {UOFF+512-32-448}")
        a(f"v_and_b32 v3, 3, v2\nv_mul_u32_u24 v3, {KST}, v3\nv_bfe_u32 v4, v2, 2, 2\nv_lshlrev_b32 v4, 3, v4\nv_sub_u32 v3, v3, v4")
        a(f"v_lshrrev_b32 v4, 4, v2\nv_lshlrev_b32 v5, 4, v4\nv_add3_u32 v{vCA0}, v3, v5, s80")
        a(f"v_and_b32 v3, 15, v2\nv_lshlrev_b32 v3, 5, v3\nv_add3_u32 v{vCB0}, v3, v5, s81")
        a(f"v_bfe_u32 v4, v2, 4, 1\nv_lshlrev_b32 v4, 9, v4\nv_lshrrev_b32 v5, 5, v2\nv_lshlrev_b32 v5, 4, v5\nv_add3_u32 v{vAS}, v3, v4, v5")

def hstore(t, i): return f"buffer_store_dwordx4 {vr(HC+8*t+4*i,4)}, v{vHS}, {srd(SWS)}, s{sHA+t} offen offset:{256*i} sc1"
def g1_loop(a, nt, tag, first=()):
    rw = 32 * nt; slot = (2 * rw) * 128 + 16384
    stamp(a, 2)
    if nt == 3: hops(a, "B")
    a("s_barrier")
    stamp(a, 3)
    for x in g1_reads(nt, 0, 0): a(x)
    a("s_waitcnt lgkmcnt(0)")
    phase(a, g1_mfmas(nt, 0, True), g1_reads(nt, 1, 1), first)
    a(f"s_branch L_g1b_{tag}")
    g1_flags(a, nt, tag)
    a.label(f"L_g1_{tag}")
    if nt == 3:
        a("s_cmp_eq_u32 s72, 2\ns_cbranch_scc1 L_f2")
        a.label("L_f2r")
        if cfg.kc < 100 and cfg.ms != 2:
            a(f"s_cmp_eq_u32 s72, {cfg.ms}\ns_cbranch_scc1 L_f3")
            a.label("L_f3r")
    a(f"s_cmp_eq_u32 s72, s{sT1FS}\ns_cbranch_scc1 L_f1_{tag}")
    a.label(f"L_f1r_{tag}")
    a(f"s_add_u32 s73, s73, 1\ns_cmp_eq_u32 s73, 3\ns_cselect_b32 s75, {(-2*slot) & 0xffffffff}, s74\ns_cselect_b32 s73, 0, s73")
    a("s_waitcnt lgkmcnt(0)")
    phase(a, g1_mfmas(nt, 0), g1_reads(nt, 1, 1))
    a.label(f"L_g1b_{tag}")
    a("s_waitcnt lgkmcnt(0)")
    phase(a, g1_mfmas(nt, 1), g1_reads(nt, 2, 0))
    a("s_waitcnt lgkmcnt(0)")
    phase(a, g1_mfmas(nt, 0), g1_reads(nt, 3, 1), [f"v_add_u32 v{vA1+i}, s75, v{vA1+i}" for i in range(5)])
    a(f"s_cmp_eq_u32 s72, 9\ns_waitcnt lgkmcnt(0)\ns_cbranch_scc1 L_g1_nb{tag}\ns_barrier")
    a.label(f"L_g1_nb{tag}")
    phase(a, g1_mfmas(nt, 1), g1_reads(nt, 0, 0), ["s_add_u32 s72, s72, 1", "s_cmp_lt_u32 s72, 10"])
    a(f"s_cbranch_scc1 L_g1_{tag}")
    stamp(a, 4)
    a.reset()
    for t in range(nt):
        g = ACC1 + 32 * t; u = g + 16; o = HC + 8 * t
        for i in range(0, 16, 2): a(f"v_pk_mul_f32 {vr(g+i,2)}, {vr(g+i,2)}, {vr(u+i,2)}")
        for i in range(8): a(f"v_cvt_pk_bf16_f32 v{o+i}, v{g+2*i}, v{g+2*i+1}")
        if nt == 4 or not cfg.hp:
            for i in range(2):
                if nt == 4:
                    if 2 * t + i == cfg.lb: a("s_waitcnt lgkmcnt(0)\ns_barrier")
                    a.win(cfg.lw - 1)
                a(hstore(t, i))
    if nt == 4 and cfg.lb >= 8: a("s_waitcnt lgkmcnt(0)\ns_barrier")
    stamp(a, 5)
def g1_flags(a, nt, tag):
    if nt == 3:
        def hand():
            a.unc(f"v_add_u32 v18, s89, v{vL16}")
            for i in range(4): a.unc(f"ds_write_b128 v18, {vr(KP+4*i,4)} offset:{40960+1024*i}")
        a.label("L_f2")
        if cfg.kc < 100 and cfg.ms == 2: hand()
        a.unc("s_waitcnt vmcnt(0)")
        for l in one_flag(sT2 + 1): a.unc(l)
        a("s_branch L_f2r")
        if cfg.kc < 100 and cfg.ms != 2:
            a.label("L_f3"); hand(); a("s_branch L_f3r")
    a.label(f"L_f1_{tag}")
    for l in one_flag(sT1FL): a.unc(l)
    a(f"s_branch L_f1r_{tag}")
def h_flag(a, nt):
    a(f"v_lshlrev_b32 v18, 8, v2\nv_mov_b32 v19, 1\ns_mov_b64 exec, {(1<<nt)-1}")
    a.unc(f"buffer_store_dword v19, v18, {srd(SWS)}, s{sT1SL} offen sc1")
    a("s_mov_b64 exec, -1")
HPOLL = f"buffer_load_dword v18, v{vHF}, {srd(SWS)}, 0 offen sc1"
T_EARLY = "v_cmp_ne_u32 vcc, 1, v18\ns_and_b32 s92, vcc_lo, 0xfff"
T_LATE = "v_cmp_ne_u32 vcc, 1, v18\ns_and_b32 s92, vcc_lo, 0x7ffffff"

E1, E8, E256, E2, E4 = 30, 34, 38, 42, 46
GA, GB, GH, GH2 = 50, 52, 54, 56
vKR = 58; KP = 48; KSC = 8704
def cmul(a, d, x, y, conj=False):
    if cfg.pk:
        a(f"v_pk_mul_f32 {vr(d,2)}, {vr(x,2)}, {vr(y,2)} op_sel:[0,0] op_sel_hi:[0,1]" + (" neg_hi:[0,1]" if conj else ""))
        a(f"v_pk_fma_f32 {vr(d,2)}, {vr(x,2)}, {vr(y,2)}, {vr(d,2)} op_sel:[1,1,0] op_sel_hi:[1,0,1]" + ("" if conj else " neg_lo:[0,1,0]"))
        return
    im, nim = (y + 2, y + 1) if conj else (y + 1, y + 2)
    a(f"v_mul_f32 v{d}, v{x}, v{y}\nv_mul_f32 v{d+1}, v{x}, v{im}\nv_fmac_f32 v{d}, v{x+1}, v{nim}\nv_fmac_f32 v{d+1}, v{x+1}, v{y}")
pk = [0]
def put(a, x, rows):
    t = 28 + (pk[0] & 1); pk[0] += 1
    a(f"v_cvt_pk_bf16_f32 v{t}, v{x}, v{x+1}")
    for r in rows: a.lg(f"ds_write_addtid_b32 v{t} offset:{r*272}")
def mrow(r, hf): return 8 * (r >> 2) + 4 * hf + (r & 3)
def kgen_addr(a, half):
    a(f"s_lshl2_add_u32 s89, s{sIDX}, s{sHW}\ns_lshl_b32 s90, s89, 1\ns_lshl_b32 s91, s89, 8")
    if half: a("s_bitset1_b32 s91, 7")
    a(f"v_lshl_add_u32 v4, v2, 1, s91\nv_mov_b32 v5, s90")
def kgen_issue(a):
    a.unc(f"global_load_ushort v26, v5, {sp(P_LDT)}")
    for i, p in enumerate((P_ARE, P_AIM, P_BRE, P_BIM, P_CRE, P_CIM)):
        a.unc(f"global_load_ushort v{20+i}, v4, {sp(p)} nt")
    a.unc(f"global_load_ushort v27, v5, {sp(P_DSK)}")
def kgen(a, mid=None, tail=None, top=True):
    a(f"s_mul_i32 s81, s{sHW}, {KSC}\ns_add_u32 s89, s81, {122880 if top else 81920}\ns_mov_b32 m0, s89")
    a(f"v_and_b32 v4, 31, v2\nv_mul_u32_u24 v4, 272, v4\nv_lshrrev_b32 v5, 5, v2\nv_lshlrev_b32 v5, 4, v5\nv_add3_u32 v{vKR}, v4, v5, s89")
    hi = struct.unpack("<f", struct.pack("<f", LOG2E))[0]; lo = LOG2E - hi
    a(f"v_lshlrev_b32 v26, 16, v26\ns_mov_b32 s83, {fbits(hi)}")
    a(f"v_mul_f32 v3, s83, v26\nv_fma_f32 v4, v26, s83, -v3\nv_fmac_f32 v4, {fbits(lo)}, v26\nv_exp_f32 v3, v3")
    a(f"v_mul_f32 v4, {fbits(math.log(2.0))}, v4\nv_fmac_f32 v3, v3, v4\nv_cvt_pk_bf16_f32 v3, v3, v3\nv_lshlrev_b32 v26, 16, v3")
    for i in range(6): a(f"v_lshlrev_b32 v{20+i}, 16, v{20+i}")
    for i in range(4): a(f"v_mul_f32 v{20+i}, v26, v{20+i}")
    for (E, R) in ((E1, 1), (E8, 8), (E256, 256)):
        a(f"v_mul_f32 v3, {fbits(R*LOG2E)}, v20\nv_mul_f32 v4, {fbits(R/(2*math.pi))}, v21\nv_exp_f32 v3, v3\nv_fract_f32 v4, v4")
        a(f"v_cos_f32 v5, v4\nv_sin_f32 v6, v4\nv_mul_f32 v{E}, v3, v5\nv_mul_f32 v{E+1}, v3, v6")
        if not cfg.pk or E == E8: a(f"v_sub_f32 v{E+2}, 0, v{E+1}")
    a(f"v_mul_f32 v{GA}, v24, v22\nv_mul_f32 v{GA+1}, v24, v23\nv_fma_f32 v{GA}, -v25, v23, v{GA}\nv_fmac_f32 v{GA+1}, v25, v22")
    cmul(a, E2, E1, E1)
    if not cfg.pk: a(f"v_sub_f32 v{E2+2}, 0, v{E2+1}")
    cmul(a, E4, E2, E2)
    if not cfg.pk: a(f"v_sub_f32 v{E4+2}, 0, v{E4+1}")
    cmul(a, GH, GA, E256)
    if cfg.stamps > 2: stamp(a, 40)
    put(a, GA, [mrow(0, 0)])
    cur, oth = GA, GB
    for r in range(1, 8):
        cmul(a, oth, cur, E1); cur, oth = oth, cur
        put(a, cur, [mrow(r, 0)])
    put(a, GH, [mrow(0, 1), mrow(1, 1)])
    cmul(a, GA, GH, E2); put(a, GA, [mrow(2, 1)])
    cmul(a, GB, GA, E2); put(a, GB, [mrow(3, 1), mrow(4, 1), mrow(5, 1)])
    cmul(a, GA, GB, E2); put(a, GA, [mrow(6, 1)])
    cmul(a, GB, GH, E8); put(a, GB, [mrow(7, 1)])
    h, h2 = GH, GH2
    for hf in range(2):
        cmul(a, h2, h, E256); h, h2 = h2, h
        put(a, h, [mrow(8, hf)])
        cmul(a, GA, h, E4); put(a, GA, [mrow(9, hf)])
        cmul(a, GB, h, E8); put(a, GB, [mrow(10, hf)])
    for q in range(4):
        cmul(a, h2, h, E256); h, h2 = h2, h
        put(a, h, [mrow(11 + 2 * (q >> 1), q & 1)])
        cmul(a, GA, h, E8); put(a, GA, [mrow(12 + 2 * (q >> 1), q & 1)])
    for ks in range(8): a.lg(f"ds_read_b128 {vr(64+4*ks,4)}, v{vKR} offset:{32*ks}", "kA")
    if cfg.stamps > 2: stamp(a, 41)
    if mid: mid(a)
    g = S(); g(f"v_mov_b32 v3, 0x3f80"); g.lg(f"ds_write_addtid_b32 v3"); a.atom(g)
    a(f"v_mov_b32 v{GA}, v{E8}\nv_mov_b32 v{GA+1}, v{E8+2}")
    put(a, GA, [1])
    cur, oth = GA, GB
    for c in range(2, 32):
        cmul(a, oth, cur, E8, conj=True); cur, oth = oth, cur
        put(a, cur, [c])
    if cfg.stamps > 2: stamp(a, 42)
    for ks in range(8): a.lg(f"ds_read_b128 {vr(96+4*ks,4)}, v{vKR} offset:{32*ks}", f"kB{ks}")
    for ks in range(8):
        a.wlg(f"kB{ks}")
        a(f"v_mfma_f32_32x32x16_bf16 {vr(KP,16)}, {vr(64+4*ks,4)}, {vr(96+4*ks,4)}, {vr(KP,16) if ks else 0}")
        if tail: a.add(tail[ks])

vXO = 8; vWO = 16
sSX, sSW, sKB, sLX, sLW = 70, 71, 72, 73, 74
sT1A, sGA = 75, 78
v3A, v3X, v3W, v3S, v3T, vGW = 200, 204, 236, 242, 208, 248
v1A, v1S, v2G, v2T, vDA, vDD = 249, 251, 160, 161, 254, 255
vF1, vF2, vKW, vUW, vUL, vZ = 216, 218, 221, 222, 223, 224
sUA, sT2 = 32, 34
KACC = 96; KX = 128; UREG = 200; T1D = 36; T2R = 128; T2D = 32
def loader_setup(a):
    a(f"s_lshl_b32 s89, s{sLARGE}, 1\ns_add_u32 s89, s89, 6\ns_mul_i32 s90, s89, s{sHW}\ns_lshl_b32 s{sLX}, s90, 10\ns_lshl3_add_u32 s90, s90, s{sROW0}\ns_mul_i32 s90, s90, 1280")
    a(f"v_lshrrev_b32 v3, 3, v2\nv_and_b32 v4, 7, v2\nv_lshrrev_b32 v5, 4, v2\nv_xor_b32 v5, v4, v5\nv_lshlrev_b32 v5, 4, v5")
    a(f"v_mul_u32_u24 v6, 1280, v3\nv_add3_u32 v{vXO}, v6, v5, s90\nv_xor_b32 v{vXO+1}, 64, v{vXO}")
    for j in range(2, 8):
        a(f"v_add_u32 v{vXO+j}, {8 * j * 1280 - (j & 3) * 1024}, v{vXO + (j & 1)}")
    a(f"v_add_u32 v{vXO+1}, {8*1280-1024}, v{vXO+1}")
    a(f"v_bfe_u32 v5, v2, 4, 1\nv_lshlrev_b32 v5, 2, v5\nv_xor_b32 v5, v4, v5\nv_lshlrev_b32 v5, 4, v5")
    a(f"s_mul_i32 s90, s{sHW}, {16*3456}\ns_lshl_b32 s91, s{sFT}, 7\ns_add_u32 s90, s90, s91")
    a(f"v_mul_u32_u24 v6, 3456, v3\nv_add3_u32 v{vWO}, v6, v5, s90\nv_add_u32 v{vWO+1}, {8*3456-1024}, v{vWO}")
    a(f"s_lshl1_add_u32 s89, s89, s{sHW}\ns_lshl_b32 s{sLW}, s89, 11\ns_lshl_b32 s{sSX}, s{sR}, 7\ns_mul_i32 s{sSW}, s{sSX}, 1728")
    a(f"v_and_b32 v{vGW}, 15, v2\nv_lshlrev_b32 v{vGW}, 3, v{vGW}")
def stage0(a):
    def x(j): a.unc(f"buffer_load_dwordx4 v{vXO+j}, {srd(SX)}, s{sSX} offen offset:{(j&3)*1024} lds")
    a(f"s_mov_b32 m0, s{sLX}\ns_nop 0")
    for j in range(4): x(j)
    a(f"s_add_u32 m0, s{sLX}, 4096\ns_cmp_eq_u32 s{sLARGE}, 0")
    x(4); x(5)
    a("s_cbranch_scc1 L_st0w")
    x(6); x(7)
    a.unc(f"buffer_load_dwordx2 {vr(v3W, 2)}, v{vGW}, {srd(SGW)}, s{sSX} offen")
    a.label("L_st0w")
    for w, sr in enumerate((SWG, SWU)):
        a(f"s_add_u32 m0, s{sLW}, {w*8192}\ns_nop 0")
        a.unc(f"buffer_load_dwordx4 v{vWO}, {srd(sr)}, s{sSW} offen lds")
        a.unc(f"buffer_load_dwordx4 v{vWO+1}, {srd(sr)}, s{sSW} offen offset:1024 lds")
    a(f"s_add_u32 s{sSX}, s{sSX}, 128\ns_cmp_eq_u32 s{sSX}, 1280\ns_cselect_b32 s{sSX}, 0, s{sSX}")
def g1_dmas(nt, stage):
    nx = 2 * nt; slot = (64 * nt) * 128 + 16384; sb = (stage % 3) * slot; tag = f"st{stage}"
    r = S()
    def grp(*lines):
        g = S()
        for l in lines:
            if l.startswith("buffer_"): g.vm(l, tag)
            else: g(l)
        r.atom(g)
    adv = [f"s_add_u32 s{sSX}, s{sSX}, 128", f"s_cmp_eq_u32 s{sSX}, 1280", f"s_cselect_b32 s{sSX}, 0, s{sSX}"] if stage < 9 else []
    for j in range(nx):
        if j == 0: grp(f"s_add_u32 m0, s{sLX}, {sb}", f"s_mul_i32 s{sSW}, s{sSX}, 1728")
        elif j == 4: grp(f"s_add_u32 m0, s{sLX}, {sb + 4096}")
        grp(f"buffer_load_dwordx4 v{vXO+j}, {srd(SX)}, s{sSX} offen offset:{(j&3)*1024} lds")
    for w, sr in enumerate((SWG, SWU)):
        grp(f"s_add_u32 m0, s{sLW}, {sb + w*8192}")
        grp(f"buffer_load_dwordx4 v{vWO}, {srd(sr)}, s{sSW} offen lds")
        if w == 0 and nt == 3: grp(*adv)
        grp(f"buffer_load_dwordx4 v{vWO+1}, {srd(sr)}, s{sSW} offen offset:1024 lds")
    if nt == 4: grp(f"buffer_load_dwordx2 {vr(v3W + 2*(stage%3), 2)}, v{vGW}, {srd(SGW)}, s{sSX} offen", *adv)
    return r
def side_a(a, nt):
    a(f"v_min_u32 v{vDA}, {cfg.ncl-1}, v2\nv_lshlrev_b32 v{vDA}, 2, v{vDA}")
    if nt == 3: return
    slot = (64 * nt) * 128 + 16384
    a(f"s_max_i32 s80, s{sQ16}, 0\ns_lshl_b32 s81, s{sHW}, 3\ns_add_u32 s80, s80, s81")
    a(f"v_lshrrev_b32 v3, 4, v2\nv_add_u32 v3, s80, v3\nv_lshrrev_b32 v4, 1, v3\nv_lshrrev_b32 v5, 1, v2\nv_xor_b32 v4, v4, v5\nv_and_b32 v4, 7, v4\nv_lshlrev_b32 v4, 4, v4")
    a(f"v_lshlrev_b32 v3, 7, v3\nv_and_b32 v5, 1, v2\nv_lshlrev_b32 v5, 3, v5\nv_add3_u32 v{v3A}, v3, v4, v5\nv_xor_b32 v3, 32, v{v3A}\nv_add_u32 v{v3A+1}, 512, v3")
    a(f"v_add_u32 v{v3A+2}, {2*slot}, v{v3A}\nv_add_u32 v{v3A+3}, {2*slot}, v{v3A+1}\nv_mov_b32 v{v3S}, 0\nv_mov_b32 v{v3S+1}, 0")
    a(f"s_add_u32 s80, s80, s{sROW0}\ns_lshl_b32 s80, s80, 2\ns_add_u32 s80, s80, {WS_G}\ns_cmp_ge_i32 s{sQ16}, 0\ns_cselect_b32 s{sGA}, s80, {OOB}")
def atoms(f, *args):
    t = S(); f(t, *args); return t
def side_b(a, nt):
    t3, t4, t5, t6 = 228, 229, 230, 231
    a(f"s_and_b32 s84, s{sT1SL}, 1\ns_mul_i32 s84, s84, {32*nt}")
    a(f"v_lshrrev_b32 v{t3}, 4, v2\nv_bfe_u32 v{t4}, v2, 2, 2\nv_lshl_add_u32 v{t5}, v{t3}, 3, v{t4}\nv_add_u32 v{t5}, s84, v{t5}\nv_lshlrev_b32 v{t5}, 7, v{t5}")
    a(f"v_lshrrev_b32 v{t4}, 1, v{t4}\nv_and_b32 v{t6}, 1, v{t3}\nv_lshl_or_b32 v{t4}, v{t6}, 2, v{t4}\nv_bfe_u32 v{t6}, v2, 1, 1\ns_lshl_b32 s85, s{sHW}, 1\nv_or_b32 v{t6}, s85, v{t6}\nv_xor_b32 v{t4}, v{t4}, v{t6}")
    a(f"v_lshlrev_b32 v{t4}, 4, v{t4}\nv_and_b32 v{t6}, 1, v2\nv_lshlrev_b32 v{t6}, 3, v{t6}\nv_add3_u32 v{v1A}, v{t5}, v{t4}, v{t6}\nv_xor_b32 v{t4}, 32, v{v1A}\nv_add_u32 v{v1A+1}, 512, v{t4}")
    a(f"v_and_b32 v{t4}, 15, v2\nv_lshlrev_b32 v{t4}, 6, v{t4}\nv_lshl_add_u32 v{v1S}, v{t3}, 4, v{t4}")
    g = S(); g(f"s_add_u32 s85, s{sR}, s{sT1S}\ns_cmp_ge_u32 s85, 10\ns_cselect_b32 s86, 10, 0\ns_sub_u32 s85, s85, s86"); a.atom(g)
    a(f"s_lshl_b32 s85, s85, 2\ns_add_u32 s85, s85, s{sHW}")
    a(f"s_lshl_b32 s86, s85, 16\ns_add_u32 s84, s84, s{sROW0}\ns_lshl_b32 s84, s84, 5\ns_add_u32 s86, s86, s84\ns_add_u32 s{sT1A}, s86, {WS_UT}")
def side_c(a, nt):
    t3 = 228
    a(f"s_mul_i32 s80, s{sCT}, 5\ns_lshr_b32 s80, s80, 2\ns_lshl_b32 s80, s80, 8\ns_add_u32 s80, s80, {T2F}\nv_min_u32 v{t3}, 53, v2\nv_lshlrev_b32 v{t3}, 2, v{t3}\nv_add_u32 v{vF2}, s80, v{t3}")
    a(f"s_mul_i32 s69, s{sCT}, 276480\ns_and_b32 s80, s{sHW}, 1\ns_mul_i32 s80, s80, 5120\ns_add_u32 s69, s69, s80\ns_add_u32 s69, s69, {WS_WD}")
    a(f"s_lshr_b32 s82, s{sHW}, 1\ns_mul_i32 s83, s82, 51200\ns_add_u32 s89, s83, s69\ns_mul_i32 s82, s82, 10240\ns_add_u32 s69, s69, s82")
    g = S(); col_order(g, 10240, 89)
    ops = g.ops; t = S(); t.ops = ops[:4]; a.atom(t)
    for j in range(5):
        t = S(); t.ops = ops[4 + 6 * j: 10 + 6 * j]; a.atom(t)
    if nt == 3:
        a(f"s_lshr_b32 s81, s{sIDX}, 2\ns_lshl_b32 s81, s81, 7\nv_min_u32 v{t3}, 19, v2\nv_lshlrev_b32 v{t3}, 2, v{t3}\nv_add_u32 v{vF1}, s81, v{t3}")
        a(f"s_mul_i32 s81, s{sHW}, {KCH}\ns_add_u32 s81, s81, {KOFF+1008}\nv_sub_u32 v{vKW}, s81, v{vL16}\ns_mul_i32 s81, s{sHW}, {UCH}\ns_add_u32 s81, s81, {UOFF+512}\nv_add_u32 v{vUW}, s81, v{vL16}")
        for i in range(2): a(f"v_mov_b64 {vr(vZ+2*i,2)}, 0")
        a(f"s_and_b32 s81, s{sIDX}, 3\ns_lshl_b32 s81, s81, 2\ns_add_u32 s81, s81, s{sHW}\ns_lshl_b32 s81, s81, 6\ns_lshr_b32 s82, s{sIDX}, 2\ns_lshl_b32 s82, s82, 16\ns_add_u32 s81, s81, s82\ns_add_u32 s{sUA}, s81, {WS_UT}")
        a(f"v_lshrrev_b32 v{t3}, 2, v2\nv_lshlrev_b32 v{t3}, 10, v{t3}\nv_and_b32 v{vUL}, 3, v2\nv_lshl_add_u32 v{vUL}, v{vUL}, 4, v{t3}")
def t3_read(a, s):
    slot = 49152; k = s % 3
    for i in range(2): a.lg(f"ds_read_b64 {vr(v3X+2*i,2)}, v{v3A + i + 2 * (k >> 1)} offset:{(k & 1) * slot}", "t3")
def t3_step(s):
    a = S(); w = v3W + 2 * (s % 3); wl = v3T; t = v3T + 2
    for i in range(2): a(f"v_lshlrev_b32 v{wl+i}, 16, v{w+i}\nv_and_b32 v{w+i}, 0xffff0000, v{w+i}")
    a.wlg("t3")
    for r in range(2):
        for i in range(2):
            x = v3X + 2 * r + i
            a(f"v_lshlrev_b32 v{t}, 16, v{x}\nv_and_b32 v{x}, 0xffff0000, v{x}\nv_mul_f32 v{t}, v{t}, v{wl+i}\nv_mul_f32 v{x}, v{x}, v{w+i}")
            a(f"v_cvt_pk_bf16_f32 v{t}, 0, v{t}\nv_cvt_pk_bf16_f32 v{x}, 0, v{x}\nv_add_f32 v{v3S+r}, v{v3S+r}, v{t}\nv_add_f32 v{v3S+r}, v{v3S+r}, v{x}")
    return a
def t3_final():
    a = S(); x = v3S
    for m in ("quad_perm:[1,0,3,2]", "quad_perm:[2,3,0,1]", "row_half_mirror", "row_mirror"):
        for r in range(2): a(f"v_add_f32_dpp v{x+r}, v{x+r}, v{x+r} {m} row_mask:0xf bank_mask:0xf")
    a(f"v_and_b32 v3, 15, v2\nv_cmp_eq_u32 vcc, 1, v3\nv_cndmask_b32 v{x}, v{x}, v{x+1}, vcc")
    a(f"v_cvt_pk_bf16_f32 v{x}, 0, v{x}\nv_mul_f32 v{x}, {fbits(-LOG2E)}, v{x}\nv_exp_f32 v{x}, v{x}")
    a(f"v_add_f32 v{x}, 1.0, v{x}\nv_rcp_f32 v{x}, v{x}\nv_cvt_pk_bf16_f32 v{x}, 0, v{x}")
    a(f"v_sub_f32 v{x+1}, 1.0, v{x}\nv_cvt_pk_bf16_f32 v{x}, v{x}, v{x+1}")
    a(f"v_lshrrev_b32 v4, 4, v2\nv_lshlrev_b32 v4, 2, v4\nv_lshl_add_u32 v4, v3, 4, v4\nv_cmp_gt_u32 vcc, 2, v3\nv_mov_b32 v3, {OOB}\nv_cndmask_b32 v3, v3, v4, vcc")
    a.vm(f"buffer_store_dword v{x}, v3, {srd(SWS)}, s{sGA} offen sc1", "gst")
    return a
def cond(a, sreg, val, body):
    D = newlab("c"); g = S()
    g(f"s_cmp_eq_u32 s{sreg}, {val}\ns_cbranch_scc0 {D}")
    for l in body: g.unc(l)
    g.label(D); a.atom(g)
def t1_reads(a, nt, s):
    sb = (s % 3) * ((64 * nt) * 128 + 16384)
    b = [f"v_add_u32 v3, {sb}, v{v1A}", f"v_add_u32 v4, {sb}, v{v1A+1}"]
    T1D = t1d(nt)
    for j in range(nt):
        for rd in range(2): b.append(f"ds_read_b64_tr_b16 {vr(T1D+4*j+2*rd,2)}, v{3+rd} offset:{4096*j}")
    cond(a, sT1S, s, b)
def t1d(nt): return UREG if nt == 3 else T1D
def t1_stores(a, nt, s):
    T1D = t1d(nt)
    cond(a, sT1S, s, ["s_waitcnt lgkmcnt(0)"] + [f"buffer_store_dwordx4 {vr(T1D+4*j,4)}, v{v1S}, {srd(SWS)}, s{sT1A} offen offset:{1024*j} sc1" for j in range(nt)])
def one_flag(sreg): return ["v_mov_b32 v18, 0", "v_mov_b32 v19, 1", "s_mov_b64 exec, 1", f"buffer_store_dword v19, v18, {srd(SWS)}, s{sreg} offen sc1", "s_mov_b64 exec, -1"]
DBGL = f"buffer_load_dword v{vDD}, v{vDA}, {srd(SDBG)}, 0 offen sc1"
def t2_loads():
    r = S()
    for i in range(4):
        g = S()
        if i: g(f"s_add_u32 s{sT2}, s{sT2}, 10240")
        g.vm(f"buffer_load_dwordx4 {vr(T2R+4*i,4)}, v{v2G}, {srd(SWD)}, s{sT2} offen nt", "t2"); r.atom(g)
    return r
def t2_issue(a):
    R = sT2; u = sU2
    a(f"s_mul_i32 s84, s{u}, 6554\ns_lshr_b32 s84, s84, 16\ns_mul_i32 s85, s84, 10\ns_sub_u32 s85, s{u}, s85")
    a(f"s_mul_i32 s86, s84, {32*1280}\ns_lshl_b32 s87, s85, 7\ns_add_u32 s86, s86, s87\ns_cmp_lt_u32 s{u}, 540\ns_cselect_b32 s{R}, s86, {OOB}")
    a(f"v_lshrrev_b32 v3, 3, v2\nv_mul_u32_u24 v4, 1280, v3\nv_and_b32 v5, 7, v2\nv_lshl_add_u32 v{v2G}, v5, 4, v4")
    if cfg.t2q < 0: a.add(t2_loads())
    a(f"s_lshl_b32 s86, s85, 8\ns_lshl_b32 s87, s84, 2\ns_add_u32 s86, s86, s87\ns_add_u32 s{R+1}, s86, {T2F}")
    a(f"s_lshl_b32 s85, s85, 2\ns_mul_i32 s87, s85, 52\ns_lshr_b32 s87, s87, 8\ns_mul_i32 s88, s87, 5\ns_sub_u32 s86, s85, s88\ns_sub_u32 s{R+4}, 5, s86")
    a(f"s_mul_i32 s87, s87, 276480\ns_lshl_b32 s86, s86, 10\ns_add_u32 s86, s86, s87\ns_mul_i32 s84, s84, 5120\ns_add_u32 s86, s86, s84\ns_add_u32 s86, s86, {WS_WD}")
    a(f"s_cmp_lt_u32 s{u}, 540\ns_cselect_b32 s{R+1}, s{R+1}, {OOB}\ns_cselect_b32 s{R+2}, s86, {OOB}\ns_add_u32 s{R+3}, s{R+2}, {276480-5120}")
    for q in range(1, 4): a(f"s_cmp_le_u32 s{R+4}, {q}\ns_cselect_b32 s{R+5+q}, s{R+3}, s{R+2}")
    a(f"v_bfe_u32 v3, v2, 4, 1\nv_lshlrev_b32 v3, 4, v3\nv_lshrrev_b32 v4, 5, v2\nv_lshlrev_b32 v4, 2, v4\nv_bfe_u32 v5, v2, 2, 2\nv_add3_u32 v3, v3, v4, v5")
    a(f"v_lshlrev_b32 v3, 7, v3\nv_and_b32 v4, 3, v2\nv_lshl_add_u32 v{v2T}, v4, 3, v3")
def t2_lds():
    r = []
    for i in range(4):
        g = S()
        if i == 0: g(f"v_add_u32 v{v2G}, s89, v{vL16}\nv_add_u32 v{v2T}, s89, v{v2T}"); g.wvm("t2")
        g.lg(f"ds_write_b128 v{v2G}, {vr(T2R+4*i,4)} offset:{1024*i}"); r.append(g)
    for q in range(4):
        g = S()
        for rd in range(2): g.lg(f"ds_read_b64_tr_b16 {vr(T2D+4*q+2*rd,2)}, v{v2T} offset:{rd*1024+q*32}", f"t2a{q}")
        r.append(g)
    return r
def t2_stores():
    R = sT2
    return [f"buffer_store_dwordx4 {vr(T2D+4*q,4)}, v{vL16}, {srd(SWS)}, s{R+5+q if q else R+2} offen offset:{q*1024} sc1" for q in range(4)]
def k_merge():
    a = S()
    a(f"s_mul_i32 s80, s{sHW}, {KSC}\ns_add_u32 s80, s80, 122880\nv_add_u32 v5, s80, v{vL16}")
    for i in range(4): a.lg(f"ds_read_b128 {vr(KACC+4*i,4)}, v5 offset:{1024*i}", "km")
    a("v_lshlrev_b32 v27, 16, v27\nv_cmp_eq_u32 vcc, 0, v2\nv_cndmask_b32 v27, 0, v27, vcc")
    a(f"v_add_f32 v{KP}, v{KP}, v27")
    a.wlg("km")
    for i in range(16): a(f"v_add_f32 v{KACC+i}, v{KACC+i}, v{KP+i}")
    return a
def k_expand():
    a = S(); K = KACC
    def cv(d, x, y): a(f"v_cvt_pk_bf16_f32 v{d}, v{x}, v{y}")
    for P in range(4):
        d = KX + 18 * P
        if P == 0:
            for i in range(4): cv(d + i, K + 7 - 2 * i, K + 6 - 2 * i)
        elif P == 1:
            x = K + 8; cv(d, x + 2, x + 2); cv(d + 1, x + 1, x + 1); cv(d + 2, x + 1, x); cv(d + 3, x, x)
        else:
            x = K + 11 + 2 * (P - 2)
            g = S(); g(f"v_and_b32 v5, 1, v2\nv_cmp_eq_u32 vcc, 1, v5\nv_cndmask_b32 v5, v{x}, v{x+1}, vcc\nv_cvt_pk_bf16_f32 v{d+1}, v{x+1}, v5"); a.atom(g)
            cv(d, x + 1, x + 1); cv(d + 2, x, x); cv(d + 3, x, x)
    for P in range(4):
        d = KX + 18 * P
        for i in range(2):
            if P == 0: a(f"v_mov_b32_dpp v{d+4+i}, v{d+i} wave_shr:1 row_mask:0xf bank_mask:0xf bound_ctrl:0")
            else: a(f"v_mov_b32_dpp v{d+4+i}, v{d-18+i} wave_ror:1 row_mask:0xf bank_mask:0xf")
        for i in range(3): a(f"v_mov_b32 v{d+14+i}, v{d+1+i}")
        if P:
            for i in range(2): a(f"v_mov_b32_dpp v{d+4+i}, v{d+i} wave_shr:1 row_mask:0xf bank_mask:0xf")
        for i in range(4): a(f"v_alignbit_b32 v{d+6+i}, v{d+i+1}, v{d+i}, 16")
        for i in range(4): a(f"v_alignbit_b32 v{d+10+i}, v{d+i+2}, v{d+i+1}, 16")
        a(f"v_mov_b32 v{d+17}, v{d+4}")
    return a
def k_writes(a, copies):
    for c in copies:
        r = {3: 0, 2: 6, 0: 10, 1: 14}[c]
        for P in range(4): a.lg(f"ds_write_b128 v{vKW}, {vr(KX+18*P+r,4)} offset:{(3-P)*1024 + c*KST}")
def split(s, n):
    k = len(s.ops); out = []
    for i in range(n):
        r = S(); r.ops = s.ops[k * i // n: k * (i + 1) // n]; out.append(r)
    return out
vL16B = 16
def wreg(m, p): return 36 + 20 * (m - 3) + 4 * p
def wd_addr(a, m, s):
    if m < 10: a(f"s_add_u32 s{s}, s{sFJ + (m >> 1)}, {(m & 1) * 102400}")
    elif m < 13: a(f"s_add_u32 s{s}, s69, {m * 20480}")
    else: a(f"s_lshr_b32 s{s}, s{sHW}, 1\ns_mul_i32 s{s}, s{s}, 10240\ns_sub_u32 s{s}, s69, s{s}\ns_add_u32 s{s}, s{s}, {26 * 10240}")
def wd_loads(lo, hi, win):
    r = S()
    for k in range(lo, hi):
        m = 3 + k // 5; p = k % 5; g = S()
        if p == 0 or k == lo: wd_addr(g, m, 87)
        if win: g.win(win)
        g.vm(f"buffer_load_dwordx4 {vr(wreg(m,p),4)}, v{vL16 if p < 4 else vL16B}, {srd(SWS)}, s87 offen offset:{(p&3)*1024} sc1", f"w{k}")
        r.atom(g)
    return r
def wd_dma(a):
    a(f"s_mul_i32 s82, s{sHW}, 5120")
    for m in range(3):
        wd_addr(a, m, 80)
        a(f"s_add_u32 m0, s82, {m*20480}")
        for p in range(4):
            a.win(cfg.win)
            a.vm(f"buffer_load_dwordx4 v{vL16}, {srd(SWS)}, s80 offen offset:{p*1024} sc1 lds", "P0")
        a(f"s_add_u32 m0, s82, {m*20480+4096}")
        a.win(cfg.win)
        a.vm(f"buffer_load_dwordx4 v{vL16B}, {srd(SWS)}, s80 offen sc1 lds", "P0")
F1L = [f"buffer_load_dword v{vF1+1}, v{vF1}, {srd(SWS)}, 0 offen sc1"]
F2L = [f"buffer_load_dword v{vF2+1}, v{vF2}, {srd(SWS)}, 0 offen sc1", f"buffer_load_dword v{vF2+2}, v{vF2}, {srd(SWS)}, 0 offen offset:256 sc1"]
T_F2 = f"v_and_b32 v{vF2+1}, v{vF2+1}, v{vF2+2}\n" + t_all(vF2 + 1)

def spread(main, side, p0, p1):
    n = len(main.ops); k = len(side.ops); r = S()
    pos = [(k * p0) // 100 + ((k * (p1 - p0)) // 100) * i // max(n - 1, 1) for i in range(n)]
    mi = 0
    for i in range(k + 1):
        while mi < n and pos[mi] <= i: r.ops.append(main.ops[mi]); mi += 1
        if i < k: r.ops.append(side.ops[i])
    r.ops += main.ops[mi:]
    return r
def helper_g1(a, nt):
    small = nt == 3
    n8, n9 = (cfg.n8, cfg.n9) if small else (cfg.l8, cfg.l9)
    a.seed(["par"] * 8 + ["st0"] * (0 if cfg.s0w else 10) if small else ["st0"] * (0 if cfg.l0w else 13))
    def cut(stage, n):
        ops = g1_dmas(nt, stage).ops; k = 0; h = S(); m0 = None
        while ops and (k < n or not any(x.kind == "vm" or "m0" in x.txt for x in ops[0].arg)):
            o = ops.pop(0); h.ops.append(o); k += sum(x.kind == "vm" for x in o.arg)
            for x in o.arg:
                if "m0" in x.txt: m0 = x
        t = S()
        if ops and m0 is not None and not any("m0" in x.txt for x in ops[0].arg):
            g = S(); g.ops = [m0]; t.atom(g)
        t.ops += ops
        return h, t
    if cfg.prio: a(f"s_setprio {cfg.prk}")
    if cfg.stamps == 2: stamp(a, 51)
    side_a(a, nt); side_b(a, nt)
    if not small: side_c(a, nt)
    if (cfg.s0w == 1 if small else cfg.l0w): a.add(g1_dmas(nt, 0))
    if cfg.stamps == 2: stamp(a, 52)
    if small:
        a.wvm("par"); stamp(a, 16)
        if cfg.s0w == 2: a.add(g1_dmas(nt, 0))
        hyb = cfg.kc < 100
        kg = S(); kgen(kg, top=hyb)
        rest = S(); rest.ops = kg.ops[len(kg) * cfg.kc // 100:]; kg.ops = kg.ops[:len(kg) * cfg.kc // 100]
        def grouped(items):
            d = S(); cur = []; m0 = None; n = 0
            def flush():
                g = S(); g.ops = cur; g("s_mov_b32 m0, s89"); d.atom(g)
            for o in items.ops:
                mine = [x for x in o.arg if "m0" in x.txt]
                if (mine or n == cfg.gs) and cur:
                    flush(); cur = [] if mine else [m0]; n = 0
                if mine: m0 = mine[0]
                cur = cur + o.arg; n += sum(x.kind == "vm" for x in o.arg)
            flush()
            return d
        n = len(kg); kg = interleave(grouped(g1_dmas(nt, 1)), kg, n * cfg.k0 // 100, n * cfg.k1 // 100)
        a.add(kg)
        if not hyb: a("s_waitcnt lgkmcnt(0)")
        region(a, "SH")
    else:
        h1, t1r = cut(1, cfg.lp)
        a.add(h1)
        if cfg.l2: a.add(g1_dmas(nt, 2))
    if cfg.stamps == 2: stamp(a, 53)
    if cfg.prk != cfg.prg: a(f"s_setprio {cfg.prg}")
    stamp(a, 2)
    late = S()
    if small and not hyb: late.add(k_expand()); late.add(atoms(side_c, nt))
    wt = cfg.wt; cuts = [len(late) * sum(wt[:i]) // sum(wt) for i in range(8)]
    if small: assert (hyb or cuts[6] > len(k_expand()) + 5) and n9 <= 23
    if small and hyb:
        ms = cfg.ms; n0 = len(rest) * cfg.kw0 // 100
        hs = [rest.ops[:n0]] + [rest.ops[n0 + (len(rest) - n0) * i // (ms - 1): n0 + (len(rest) - n0) * (i + 1) // (ms - 1)] for i in range(ms - 1)]
        hs.append(atoms(side_c, nt).ops)
        ex = k_merge().ops + k_expand().ops; m = 7 - ms
        hs += [ex[len(ex) * i // m: len(ex) * (i + 1) // m] for i in range(m)]
    assert cfg.ngc >= max(15, n9) and cfg.ng2 >= max(30, cfg.ngc) and n9 <= 41 and cfg.hp <= cfg.hf
    for s in range(10):
        if cfg.stamps == 2: stamp(a, 20 + 3 * s)
        a.wvm(f"st{s}")
        if s == 2: check(a, "dbg", [DBGL], t_all(vDD))
        if cfg.stamps == 2: stamp(a, 21 + 3 * s)
        a("s_barrier")
        if cfg.stamps == 2: stamp(a, 22 + 3 * s)
        if s == 0: stamp(a, 3)
        if s == 8: stamp(a, 5)
        t1 = ((1 <= s <= 4) if small else s == 0) if cfg.rot == 1 else s <= 4
        if not small: t3_read(a, s)
        if t1: t1_reads(a, nt, s)
        if s == 0: a.vm(DBGL, "dbg")
        if s == 7:
            for l in F2L: a.vm(l, "f2")
        if s < 8:
            sd = S()
            if not small: sd.add(t3_step(s))
            if small and hyb: sd.ops += hs[s]
            else:
                if small and s == 0: sd.add(k_merge())
                if s >= 1: sd.ops += late.ops[cuts[s - 1]:cuts[s]]
            mid = S()
            if t1: t1_stores(mid, nt, s)
            k = (len(sd) * cfg.mp) // 100
            sd.ops = sd.ops[:k] + mid.ops + sd.ops[k:]
            if s == 0 and not small and cfg.l2: a.add(sd)
            else:
                d = g1_dmas(nt, s + 2)
                if small and hyb and any("addtid" in o.txt for o in flatten(sd.ops)): d = grouped(d)
                if s == 0 and not small: d.ops = t1r.ops + d.ops
                last = d.ops.pop()
                a.add(spread(d, sd, cfg.e0, cfg.e1)); a.ops.append(last)
            if s == 7: a(f"v_add_u32 v{vL16B}, 4096, v{vL16}")
        elif s == 8:
            if small: a.vm(F1L[0], "f1")
            check(a, "f2", F2L, T_F2)
            stamp(a, 7)
            sd = S()
            if small: k_writes(sd, (3, 2))
            else: sd.add(t3_step(s))
            a.add(spread(wd_loads(0, n8, 0), sd, 0, 90))
        else:
            sd = S()
            if small:
                check(a, "f1", F1L, t_all(vF1 + 1))
                for i in range(4):
                    if i: a(f"s_add_u32 s{sUA}, s{sUA}, 16384")
                    a.vm(f"buffer_load_dwordx4 {vr(UREG+4*i,4)}, v{vUL}, {srd(SWS)}, s{sUA} offen sc1", "ut")
                stamp(a, 6)
                k_writes(sd, (0, 1))
                sd(f"v_bfe_u32 v3, v2, 1, 2\nv_mul_u32_u24 v3, {KST}, v3\nv_and_b32 v4, 1, v2\nv_lshlrev_b32 v4, 4, v4\ns_mul_i32 s80, s{sHW}, {KCH}\ns_add_u32 s80, s80, {KOFF+4096}\nv_add3_u32 v3, v3, v4, s80")
                sd.lg(f"ds_write_b128 v3, {vr(vZ,4)}")
                sd(f"v_and_b32 v4, 0x1f0, v{vL16}\nv_sub_u32 v4, v4, v{vL16}\nv_add_u32 v4, v4, v{vUW}\nv_subrev_u32 v4, 512, v4")
                sd.lg(f"ds_write_b128 v4, {vr(vZ,4)}")
                m9 = min(max(cfg.m9, n8), n9)
                a.add(spread(wd_loads(n8, m9, cfg.win), sd, 30, 100))
                a.wvm("ut")
                for i in range(4): a.lg(f"ds_write_b128 v{vUW}, {vr(UREG+4*i,4)} offset:{i*1024}")
                a.add(wd_loads(m9, n9, cfg.win))
            else:
                sd.add(t3_step(s)); sd.add(t3_final())
                a.add(spread(wd_loads(n8, n9, cfg.win), sd, 0, 130))
    stamp(a, 8)
    a("s_waitcnt lgkmcnt(0)\ns_barrier")
    stamp(a, 9)
    wd_dma(a)
    a.add(wd_loads(n9, cfg.ngc, cfg.win))
    a.wvm("P0")
    stamp(a, 10)

CA = (64, 128); CB_ = (96, 160)
def conv_reads(ph):
    A, B = CA[ph & 1], CB_[ph & 1]; o = 64 * (7 - ph); r = []
    for i in range(8):
        r.append(f"ds_read_b64 {vr(A+4*i,2)}, v{vCA0} offset:{(7-i)*512+o}")
        r.append(f"ds_read_b64 {vr(A+4*i+2,2)}, v{vCA0} offset:{(7-i)*512+o+8}")
        r.append(f"ds_read_b128 {vr(B+4*i,4)}, v{vCB0} offset:{i*512+o}")
    return r
def conv_mfmas(buf):
    A, B = CA[buf], CB_[buf]; m = []
    for tau in range(8):
        for x in range(tau + 1):
            c = CACC + 4 * tau
            m.append(f"v_mfma_f32_16x16x32_bf16 {vr(c,4)}, {vr(A+4*x,4)}, {vr(B+4*(tau-x),4)}, {vr(c,4)}")
    return m
vHA, vHB = 10, 11
def hblk(n):
    n = n % 20
    return 16 + 8 * n if n < 6 else (192 + 8 * (n - 6) if n < 10 else (144 + 8 * (n - 10) if n < 16 else 224 + 8 * (n - 16)))
def hload(n):
    b = hblk(n)
    s = f"s_add_u32 s80, s{sFJ + (n >> 2)}, {(n & 3) * 40960}" if n < 20 else f"s_add_u32 s80, s69, {n * 8192}"
    return [s, f"buffer_load_dwordx4 {vr(b,4)}, v{vHA}, {srd(SWS)}, s80 offen sc1", f"buffer_load_dwordx4 {vr(b+4,4)}, v{vHB}, {srd(SWS)}, s80 offen sc1"]
def hoff_setup(a):
    a(f"s_lshl_b32 s80, s70, 10\nv_add_u32 v{vHA}, s80, v{vL16}\nv_xor_b32 v{vHB}, 1024, v{vHA}")
def conv(a):
    hoff_setup(a)
    a(f"s_lshl_b32 s82, s{sIDX}, 2\ns_add_u32 s82, s82, s{sWAVE}\ns_lshl_b32 s79, s82, 2\ns_add_u32 s79, s79, {AF}\ns_mul_i32 s82, s82, {ATP}\ns_add_u32 s72, s82, {WS_AT}")
    a("s_waitcnt lgkmcnt(0)\ns_barrier")
    stamp(a, 6)
    for x in conv_reads(0): a(x)
    st = [hstore(t, i) for t in range(3) for i in range(2)] if cfg.hp else []
    for ph in range(8):
        if ph == cfg.hf:
            a("s_waitcnt vmcnt(0)"); h_flag(a, 3); stamp(a, 16)
        a("s_waitcnt lgkmcnt(0)")
        if ph == 7: a("s_barrier")
        fill = {i: [] for i in range(36)}
        if ph < 7:
            for i, x in enumerate(conv_reads(ph + 1)): fill[i].append(x)
        else:
            g = S(); g2_first(g)
            for i, o in enumerate(g.ops): fill[2 * i].append(o.txt)
        if ph < cfg.hp:
            mine = st[6 * ph // cfg.hp: 6 * (ph + 1) // cfg.hp]
            for i, x in enumerate(mine): fill[(36 * i + 12) // len(mine)].append(x)
        for i, x in enumerate(conv_mfmas(ph & 1)):
            a(x)
            for y in fill[i]: a(y)
            if ph == 7 and i == cfg.hq: a.vm(HPOLL, "hp0")
    stamp(a, 7)
    for pp in range(4):
        r = 144 + 4 * pp; c = CACC + 8 * pp
        for i in range(4): a(f"v_cvt_pk_bf16_f32 v{r+i}, v{c+2*i}, v{c+2*i+1}")
        a(f"v_permlane16_swap_b32 v{r}, v{r+2}\nv_permlane16_swap_b32 v{r+1}, v{r+3}")
        a(f"buffer_store_dwordx4 {vr(r,4)}, v{vAS}, {srd(SWS)}, s72 offen offset:{pp*1024} sc1")
    check(a, "hp0", [HPOLL], T_EARLY)
    stamp(a, 18)
    for n in range(cfg.npre):
        for x in hload(n): a(x)

HALF = 61440; XCH = 122880; ATILE = 143360
ACC2 = 64; A2 = (104, 124); vA2 = 8
def areads(n):
    v = vA2 + ((n // 6) & 1); o = (n % 6) * 10240
    return [f"ds_read_b128 {vr(A2[n&1]+4*p,4)}, v{v} offset:{o+p*1024}" for p in range(5)]
def g2_first(a):
    a(f"s_mul_i32 s80, s70, 5120\nv_add_u32 v{vA2}, s80, v{vL16}\nv_add_u32 v{vA2+1}, {HALF}, v{vA2}")
    for x in areads(0): a(x)
def helper_g2(a):
    a.label("L_help_g2"); stop(a)
    a.seed([f"w{k}" for k in range(cfg.ngc)])
    a(f"s_mul_i32 s80, s{sHW}, 5120\nv_add_u32 v8, s80, v{vL16}\nv_add_u32 v9, {HALF}, v8")
    a(f"s_mul_i32 s80, s{sCT}, 320\ns_add_u32 s80, s80, {AF}\nv_min_u32 v3, 19, v2\nv_lshlrev_b32 v3, 4, v3\nv_add_u32 v11, s80, v3")
    a(f"v_lshrrev_b32 v3, 3, v2\nv_mul_u32_u24 v3, {ATP}, v3\nv_and_b32 v4, 7, v2\nv_lshl_add_u32 v10, v4, 4, v3")
    a(f"s_mul_i32 s70, s{sCT}, {80*ATP}\ns_lshl_b32 s81, s{sRB}, 7\ns_add_u32 s70, s70, s81\ns_add_u32 s70, s70, {WS_AT}")
    a("s_barrier")
    stamp(a, 11)
    AFL = [f"buffer_load_dwordx4 v[12:15], v11, {srd(SWS)}, 0 offen sc1"]
    T_AF = "v_and_b32 v12, v12, v13\nv_and_b32 v14, v14, v15\nv_and_b32 v12, v12, v14\n" + t_all(12)
    def atile():
        for i in range(3):
            a(f"s_add_u32 s81, s{sHW}, {4*i}\ns_min_u32 s81, s81, 9\ns_lshl_b32 s82, s81, 10\ns_add_u32 m0, s82, {ATILE}\ns_mul_i32 s81, s81, {8*ATP}\ns_add_u32 s81, s81, s70")
            a.unc(f"buffer_load_dwordx4 v10, {srd(SWS)}, s81 offen sc1 lds")
    for P, ms in enumerate(((3, 4, 5), (6, 7, 8), (9, 10, 11), (12, 13)), 1):
        a.wvm(f"w{5 * (ms[-1] - 2) - 1}")
        if P == 4: a.vm(AFL[0], "af")
        wr = S()
        for m in ms:
            for p in range(5): wr.lg(f"ds_write_b128 v{8 + (P & 1)}, {vr(wreg(m,p),4)} offset:{(m % 3) * 20480 + p * 1024}")
        ld = wd_loads(cfg.ngc, cfg.ng2, cfg.win) if P == 1 else (wd_loads(cfg.ng2, 55, cfg.win2) if P == 2 else S())
        a.add(spread(ld, wr, 0, max(100, 100 * len(ld) // 5)))
        a("s_waitcnt lgkmcnt(0)")
        if P == 4:
            a.wvm("af"); a(T_AF); a("s_cselect_b32 s71, 1, 0\ns_cbranch_scc1 L_at_late")
            atile()
            a.label("L_at_late")
        a("s_barrier")
    a("s_cmp_eq_u32 s71, 0\ns_cbranch_scc1 L_at_done")
    spin(a, AFL, T_AF)
    atile()
    a.label("L_at_done")
    stamp(a, 12)
    a("s_waitcnt vmcnt(0)\ns_barrier")
    stamp(a, 13)

def gemm2_compute(a):
    a.label("L_comp_g2"); stop(a)
    NPRE = cfg.npre; NCHK = 12 - NPRE
    a.seed([f"h{n}" for n in range(NPRE) for _ in range(2)])
    a(f"s_lshl_b32 s72, s71, 1\ns_add_u32 s72, s72, s70\ns_lshl_b32 s80, s{sRB}, 2\ns_add_u32 s73, s80, s72")
    a(f"s_lshl_b32 s74, s73, 6\ns_add_u32 s74, s74, {WS_G}")
    stamp(a, 8)
    GL = f"buffer_load_dword v15, v14, {srd(SWS)}, s74 offen sc1"
    T_G = "v_cmp_eq_u32 vcc, 0, v15\ns_or_b32 s92, vcc_lo, vcc_hi"
    misc = []
    misc += f"v_and_b32 v14, 15, v2\nv_lshlrev_b32 v14, 2, v14".split("\n")
    misc += f"s_mul_i32 s81, s{sWAVE}, 5120\ns_add_u32 s81, s81, {XCH}\nv_add_u32 v12, s81, v{vL16}".split("\n")
    misc += f"v_lshrrev_b32 v4, 4, v2\nv_lshlrev_b32 v5, 2, v4\nv_bfe_u32 v6, v2, 2, 2\nv_add_u32 v5, v5, v6\nv_lshlrev_b32 v5, 7, v5\nv_and_b32 v6, 3, v2\nv_lshlrev_b32 v6, 3, v6".split("\n")
    misc += f"s_lshl_b32 s81, s72, 5\ns_add_u32 s81, s81, {ATILE}\nv_add3_u32 v3, v5, v6, s81".split("\n")
    misc += f"v_and_b32 v5, 15, v2\nv_mul_u32_u24 v5, 1280, v5\nv_lshl_add_u32 v4, v4, 3, v5\nv_bfe_u32 v6, v2, 4, 1\nv_lshl_add_u32 v5, v6, 5, v5\nv_lshrrev_b32 v6, 5, v2\nv_lshl_add_u32 v5, v6, 4, v5".split("\n")
    misc += f"s_mul_i32 s75, s73, {16*1280}\ns_mul_i32 s81, s{sCT}, 160\ns_add_u32 s75, s75, s81".split("\n")
    for n in range(27):
        bar = n % 6 == 5
        if bar: a("s_waitcnt lgkmcnt(0)\ns_barrier")
        elif n == 0: a("s_waitcnt lgkmcnt(0)")
        else: a.wlg(f"a{n}_1")
        if n == NCHK:
            check(a, "hp", [HPOLL.replace("v18", "v6")], T_LATE.replace("v18", "v6"))
            stamp(a, 9)
            g = S(); g("v_mov_b32 v5, 0\nv_mov_b32 v6, 1\ns_mov_b64 exec, 1")
            g.vm(f"buffer_store_dword v6, v5, {srd(SWS)}, s79 offen sc1", "afl"); g("s_mov_b64 exec, -1"); a.atom(g)
        a.wvm(f"h{n}")
        b = hblk(n); A = A2[n & 1]
        def mf(p, tg):
            c = ACC2 + 20 * tg + 4 * p
            return f"v_mfma_f32_16x16x32_bf16 {vr(c,4)}, {vr(A+4*p,4)}, {vr(b+4*tg,4)}, {vr(c,4) if n else 0}"
        if n < 26:
            rd = areads(n + 1); hl = hload(n + NPRE) if n + NPRE < 27 else []
            fill = {k: [] for k in range(10)}
            for p in range(5): fill[p].append(("lg", rd[p], f"a{n+1}_{p}"))
            if hl:
                fill[5].append(("i", hl[0], None)); fill[6].append(("vm", hl[1], f"h{n+NPRE}")); fill[8].append(("vm", hl[2], f"h{n+NPRE}"))
            if n == NCHK - 4: fill[9].append(("vm", HPOLL.replace("v18", "v6"), "hp"))
            if n == 20: fill[6].append(("vm", GL, "gate"))
            if n > NCHK:
                for k in (5, 7, 9):
                    if misc: fill[k].append(("i", misc.pop(0), None))
            k = 0
            for p in range(5):
                if p == 2 and not bar and n: a.wlg(f"a{n}_4")
                for tg in range(2):
                    a(mf(p, tg))
                    for kind, txt, tag in fill[k]:
                        if kind == "lg": a.lg(txt, tag)
                        elif kind == "vm": a.vm(txt, tag)
                        else: a(txt)
                    k += 1
        else:
            a("s_waitcnt lgkmcnt(0)")
            for p in range(5): a(mf(p, 1))
            for p in range(5):
                a(mf(p, 0))
                a(f"ds_write_b128 v12, {vr(ACC2+20+4*p,4)} offset:{p*1024}")
    assert not misc
    stamp(a, 10)
    a(f"s_xor_b32 s81, s{sWAVE}, 2\ns_mul_i32 s81, s81, 5120\ns_add_u32 s81, s81, {XCH}\nv_add_u32 v12, s81, v{vL16}")
    check(a, "gate", [GL], T_G)
    a("v_lshlrev_b32 v14, 16, v15\nv_and_b32 v15, 0xffff0000, v15")
    a("s_waitcnt lgkmcnt(0)\ns_barrier")
    stamp(a, 11)
    for p in range(5):
        a.lg(f"ds_read_b128 {vr(104+4*p,4)}, v12 offset:{p*1024}", f"x{p}")
        a.lg(f"ds_read_b64_tr_b16 {vr(124+2*p,2)}, v3 offset:{p*2048}", f"x{p}")
    for p in range(5):
        a.wlg(f"x{p}")
        c = ACC2 + 4 * p; o = 104 + 4 * p; t = 124 + 2 * p; r = 16 + 2 * p
        for i in range(4): a(f"v_add_f32 v{c+i}, v{c+i}, v{o+i}")
        a(f"v_lshlrev_b32 v{o}, 16, v{t}\nv_and_b32 v{o+1}, 0xffff0000, v{t}\nv_lshlrev_b32 v{o+2}, 16, v{t+1}\nv_and_b32 v{o+3}, 0xffff0000, v{t+1}")
        for i in range(4): a(f"v_mul_f32 v{c+i}, v15, v{c+i}")
        for i in range(4): a(f"v_fmac_f32 v{c+i}, v14, v{o+i}")
        a(f"v_cvt_pk_bf16_f32 v{r}, v{c}, v{c+1}\nv_cvt_pk_bf16_f32 v{r+1}, v{c+2}, v{c+3}")
        if p in (1, 3):
            r -= 2
            a(f"v_permlane16_swap_b32 v{r}, v{r+2}\nv_permlane16_swap_b32 v{r+1}, v{r+3}")
            a(f"buffer_store_dwordx4 {vr(r,4)}, v5, {srd(SOUT)}, s75 offen offset:{(p>>1)*64}")
        if p == 4: a(f"buffer_store_dwordx2 {vr(r,2)}, v4, {srd(SOUT)}, s75 offen offset:128")
    stamp(a, 12)

def sizes(lines):
    import subprocess, tempfile
    lab = [l[:-1] for l in lines if l.endswith(":")]
    src = ".amdgcn_target \"amdgcn-amd-amdhsa--gfx950\"\n.text\n" + "\n".join(lines) + "\n" + "".join(f"H_{n}{w}:\n" for n in "ABL" for w in range(4)) + "s_endpgm\n"
    with tempfile.TemporaryDirectory() as d:
        open(d + "/a.s", "w").write(src)
        subprocess.run(["clang", "-x", "assembler", "-target", "amdgcn-amd-amdhsa", "-mcpu=gfx950", "-c", d + "/a.s", "-o", d + "/a.o"], check=True)
        out = subprocess.run(["llvm-objdump", "-d", d + "/a.o"], capture_output=True, text=True, check=True).stdout
    sz = [4 * len(l.split("//")[1].split(":")[1].split("<")[0].split()) for l in out.split("\n") if "//" in l]
    assert len(sz) == sum(not l.endswith(":") for l in lines) + 1
    return sz
BASE = 0x300
def place_stops(lines):
    if not cfg.hop: return [l for l in lines if not l.startswith(("R_", "L_STOP"))]
    sz = sizes(lines); out = []; stops = []; ad = BASE; reg = None; k = 0; nxt = None
    gran = {"P": 4096, "SH": cfg.gS, "SC": cfg.gS, "LH": cfg.gL, "LC": cfg.gL, "GC": cfg.gG, "GH": cfg.gG, "SK": cfg.gS, "SJ": cfg.gS}
    def put():
        nonlocal ad
        if stops and ad - stops[-1][1] < 256 and (ad >> 12) == (stops[-1][1] >> 12) and reg[0] == stops[-1][0][0]: return
        stops.append((reg, ad, len(out))); out.append(None); ad += 4
    for l in lines:
        if l.startswith("R_"): reg = l[2:-1]; nxt = (ad // gran[reg] + 1) * gran[reg]; continue
        if l.startswith("L_STOP"): put(); continue
        if l.endswith(":"): out.append(l); continue
        if ad >= nxt:
            put(); nxt = (ad // gran[reg] + 1) * gran[reg]
        out.append(l); ad += sz[k]; k += 1
    early = [s for s in stops if s[0] in ("SK", "SJ")]
    early = sorted(early, key=lambda s: s[1] - min(t[1] for t in early if t[0] == s[0]))
    A = early[:4 * cfg.hA]
    B = [s for s in stops if s[0][0] == "S" and s not in early]
    dead = early[4 * cfg.hA:]
    L = [s for s in stops if s[0][0] == "L"]; G = [s for s in stops if s[0][0] == "G"]
    nm = {s: f"H_s{i}" for i, s in enumerate(stops)}; tgt = {}; ent = {}
    Gw = [G[::-1][w::4][::-1] for w in (3, 2, 1, 0)]
    for w in range(4):
        g = Gw[w]
        for n, ch, end in (("A", A[w::4], "L_backA"), ("G", g, "L_hret"), ("B", B[w::4], nm[g[0]] if g else "L_backB"), ("L", L[w::4], nm[g[0]] if g else "L_backL")):
            for i, s in enumerate(ch): tgt[s] = nm[ch[i + 1]] if i + 1 < len(ch) else end
            ent[f"H_{n}{w}"] = nm[ch[0]] if ch else end
    res = []
    at = {s[2]: s for s in stops}
    for i, l in enumerate(out):
        if l is None:
            s = at[i]
            if s in tgt: res += [nm[s] + ":", f"s_cbranch_execz {tgt[s]}"]
            else: res.append("s_nop 0")
        else:
            t = l.split()
            if len(t) == 2 and t[1] in ent: l = f"{t[0]} {ent[t[1]]}"
            res.append(l)
    if os.environ.get("V"): print("stops", [(r, hex(x)) for r, x, _ in stops], "dead", len(dead), "end", hex(ad))
    return res
def fin(a):
    if cfg.stamps: a("s_branch L_fin")
    else: a("s_endpgm")
def build():
    uid[0] = 0; pk[0] = 0
    a = S()
    prologue(a)
    if cfg.stamps == 2: stamp(a, 50)
    map2(a)
    a(f"s_cmp_eq_u32 s{sLARGE}, 1\ns_cbranch_scc1 L_help_large")
    region(a, "SJ")
    helper_g1(a, 3); a("s_branch L_help_g2")
    if cfg.hop:
        a.label("L_hret"); a(f"s_cmp_eq_u32 s{sLARGE}, 1\ns_cbranch_scc1 L_backL\ns_branch L_backB")
    region(a, "LH")
    a.label("L_help_large"); a.reset(); stop(a)
    helper_g1(a, 4)
    region(a, "GH")
    helper_g2(a); fin(a)
    region(a, "SK")
    a.label("L_comp"); a.reset()
    map_ws(a); clear_stores(a)
    map1(a, "c"); map2(a, False)
    a(f"s_cmp_eq_u32 s{sLARGE}, 1\ns_cbranch_scc1 L_comp_large")
    a.seed(["par"] * 8)
    t2_issue(a)
    g1_setup(a, 3)
    if cfg.hA: hops(a, "A")
    a.wvm("par")
    stamp(a, 17)
    hyb = cfg.kc < 100
    kg = S(); kgen(kg, None, t2_lds(), top=not hyb)
    if cfg.t2q >= 0: kg = interleave(t2_loads(), kg, len(kg) * cfg.t2q // 100, len(kg) * (cfg.t2q + 8) // 100)
    a.add(kg)
    if not hyb:
        a(f"v_add_u32 v3, s89, v{vL16}")
        for i in range(4): a(f"ds_write_b128 v3, {vr(KP+4*i,4)} offset:{1024*i}")
    if not cfg.t2w:
        for q, x in enumerate(t2_stores()):
            a.wlg(f"t2a{q}"); a(x)
    a("s_waitcnt lgkmcnt(0)")
    region(a, "SC")
    g1_loop(a, 3, "s", t2_stores() if cfg.t2w else ()); conv(a); a("s_branch L_comp_g2")
    region(a, "LC")
    a.label("L_comp_large"); a.reset()
    g1_setup(a, 4); signal_cleared(a)
    hops(a, "L")
    g1_loop(a, 4, "l")
    hoff_setup(a)
    a(f"s_mov_b32 s79, {OOB}\ns_waitcnt vmcnt(0)")
    h_flag(a, 4)
    stamp(a, 6)
    spin(a, [HPOLL], T_EARLY)
    stamp(a, 16)
    for n in range(cfg.npre):
        for x in hload(n): a.unc(x)
    a("s_barrier")
    stamp(a, 7)
    g2_first(a)
    region(a, "GC")
    gemm2_compute(a)
    a.label("L_fin")
    if cfg.stamps: a("s_waitcnt vmcnt(0)")
    stamp(a, 14); stamp_rt(a, 15)
    stamp_flush(a)
    a.label("L_end")
    lines = place_stops(fix_hazards([l for l in resolve(a.ops) if l.strip()]))
    hdr = open(os.path.join(os.path.dirname(os.path.abspath(__file__)), "header.txt")).read()
    body = "\n".join(("" if l.endswith(":") else "    ") + l for l in lines)
    return (hdr + f"; @launch grid=(256,1,1) block=(512,1,1) lds={LDS_BYTES}\n"
            f".amdgcn_target \"amdgcn-amd-amdhsa--gfx950\"\n.text\n.globl {KN}\n.p2align 12\n.p2align 8\n.type {KN},@function\n{KN}:\n"
            + body + "\n    s_endpgm\n"
            f".section .rodata,\"a\"\n.p2align 6\n.amdhsa_kernel {KN}\n  .amdhsa_next_free_vgpr 256\n  .amdhsa_next_free_sgpr 102\n"
            "  .amdhsa_accum_offset 256\n  .amdhsa_group_segment_fixed_size 0\n  .amdhsa_kernarg_size 136\n  .amdhsa_user_sgpr_count 2\n"
            "  .amdhsa_user_sgpr_kernarg_segment_ptr 1\n  .amdhsa_system_sgpr_workgroup_id_x 1\n.end_amdhsa_kernel\n")

if __name__ == "__main__":
    out = sys.argv[1] if len(sys.argv) > 1 else "k.s"
    for x in sys.argv[2:]:
        if x == "stamps": cfg.stamps = 1
        elif x == "stamps2": cfg.stamps = 2
        elif x == "stamps3": cfg.stamps = 3
        elif "=" in x:
            k, v = x.split("="); setattr(cfg, k, int(v))
    open(out, "w").write(build())
    print("wrote", out)
```

```python
import math, struct
def fbits(x): return "0x%08x" % struct.unpack("<I", struct.pack("<f", x))[0]
LOG2E = 1.4426950408889634
class V:
    def __init__(self, n, fix=None): self.n = n; self.r = fix; self.fix = fix is not None; self.uses = 0
    def p(self): return f"v[{self.r}:{self.r+1}]"
    def s(self, i=0): return f"v{self.r+i}"
class N:
    def __init__(self, f, d, s, kind, after=()):
        self.f = f; self.d = d; self.s = s; self.kind = kind; self.pred = list(after); self.succ = []; self.t = None; self.sec = 0
class G:
    def __init__(self): self.n = []; self.last = {}; self.sec = 0
    def op(self, f, d, s, kind="v", after=()):
        x = N(f, d, s, kind, after); x.sec = self.sec
        for v in s:
            if id(v) in self.last: x.pred.append(self.last[id(v)])
            v.uses += 1
        if d is not None: self.last[id(d)] = x
        self.n.append(x); return x
def schedule(g, pool, lat, ltr, emit, mix, gap, rg, bk, res=12):
    for x in g.n:
        for p in x.pred: p.succ.append(x)
    L = lambda x: ltr if x.kind == "t" else (lat if x.kind in "vc" else 1)
    for x in reversed(g.n): x.h = L(x) + max([s.h for s in x.succ], default=0)
    free2 = [r for r in pool if r % 2 == 0 and r + 1 in pool]
    half = []
    todo = list(g.n); t = 0; nv = 9
    while todo:
        rdy = [x for x in todo if all(p.t is not None for p in x.pred)]
        def ok(x):
            if x.d is None or x.d.r is not None: return True
            if x.d.n == 1 and half: return True
            return len(free2) > (res if x.sec and any(not y.sec for y in todo) else 0)
        rdy = [x for x in rdy if ok(x)]
        assert rdy
        now = [x for x in rdy if all(p.t + L(p) <= t for p in x.pred)]
        ge = rg if any(x.kind == "r" for x in now) else gap - (sum(x.kind == "w" for x in now) >= bk)
        if nv < ge and any(x.kind not in "wr" for x in now): now = [x for x in now if x.kind not in "wr"]
        if now: x = max(now, key=lambda x: (x.kind in "wr", -x.sec, mix and x.kind == "c", len(free2) < 4 and (x.d is None or x.d.r is not None or x.d.n == 1), x.h))
        else: x = min(rdy, key=lambda x: (max(p.t + L(p) for p in x.pred), -x.h))
        t = max([t] + [p.t + L(p) for p in x.pred])
        if x.d is not None and x.d.r is None:
            if x.d.n == 2: x.d.r = free2.pop(0)
            else:
                if not half:
                    r = free2.pop(0); half += [r, r + 1]
                x.d.r = half.pop(0)
        x.t = t; t += 1; todo.remove(x); emit(x); nv = 0 if x.kind in 'wr' else nv + 1
        for v in x.s:
            v.uses -= 1
            if v.uses == 0 and not v.fix and v is not x.d:
                if v.n == 2: free2.append(v.r)
                elif v.r ^ 1 in half: half.remove(v.r ^ 1); free2.append(v.r & ~1)
                else: half.append(v.r)
    return t
def mrow(r, hf): return 8 * (r >> 2) + 4 * hf + (r & 3)
def kgen_pre(a):
    hi = struct.unpack("<f", struct.pack("<f", LOG2E))[0]
    a(f"s_mov_b32 s83, {fbits(hi)}")
    for i, R in enumerate((1, 8, 256)): a(f"s_mov_b32 s{(84,86,90)[i]}, {fbits(R*LOG2E)}\ns_mov_b32 s{(85,87,91)[i]}, {fbits(R/(2*math.pi))}")
def kgen_main(a, vKR, lat=2, ltr=3, mix=1, gap=3, rg=0, bk=2, pool=list(range(28, 58)) + list(range(96, 128)), sc=True):
    g = G(); hi = struct.unpack("<f", struct.pack("<f", LOG2E))[0]; lo = LOG2E - hi
    A, B, C, T = V(2, 20), V(2, 22), V(2, 24), V(1, 26)
    def v1(f, s, d=None, kind="v"):
        d = d or V(1); g.op(f, d, s, kind); return d
    g.op(lambda x: "v_lshlrev_b32 v26, 16, v26", T, [])
    sh = [g.op(lambda x, i=i: f"v_lshlrev_b32 v{20+i}, 16, v{20+i}", None, []) for i in range(6)]
    p = v1(lambda x: f"v_mul_f32 {x.d.s()}, s83, v26", [T])
    q = v1(lambda x: f"v_fma_f32 {x.d.s()}, v26, s83, -{p.s()}", [T, p])
    v1(lambda x: f"v_fmac_f32 {q.s()}, {fbits(lo)}, v26", [q, T], q)
    e = v1(lambda x: f"v_exp_f32 {x.d.s()}, {p.s()}", [p], kind="t")
    v1(lambda x: f"v_mul_f32 {q.s()}, {fbits(math.log(2.0))}, {q.s()}", [q], q)
    v1(lambda x: f"v_fmac_f32 {e.s()}, {e.s()}, {q.s()}", [e, q], e)
    v1(lambda x: f"v_cvt_pk_bf16_f32 {e.s()}, {e.s()}, {e.s()}", [e], e)
    dt = V(2)
    g.op(lambda x: f"v_lshlrev_b32 {dt.s()}, 16, {e.s()}", dt, [e])
    g.op(lambda x: f"v_pk_mul_f32 v[20:21], v[20:21], {dt.p()} op_sel_hi:[1,0]", A, [dt], after=sh[0:2])
    g.op(lambda x: f"v_pk_mul_f32 v[22:23], v[22:23], {dt.p()} op_sel_hi:[1,0]", B, [dt], after=sh[2:4])
    def cmul(x, y, after=()):
        d = V(2)
        g.op(lambda n: f"v_pk_mul_f32 {d.p()}, {x.p()}, {y.p()} op_sel:[0,0] op_sel_hi:[0,1]", d, [x, y] if x is not y else [x], after=after)
        g.op(lambda n: f"v_pk_fma_f32 {d.p()}, {x.p()}, {y.p()}, {d.p()} op_sel:[1,1,0] op_sel_hi:[1,0,1] neg_lo:[0,1,0]", d, [x, y, d] if x is not y else [x, d])
        return d
    E = {}
    for i, R in enumerate((1, 8, 256)):
        mf = V(2); cs = V(2); m = V(2); d = V(2); sr = (84, 86, 90)[i]
        g.op(lambda n, mf=mf, sr=sr: f"v_pk_mul_f32 {mf.p()}, v[20:21], s[{sr}:{sr+1}]", mf, [A])
        g.op(lambda n, mf=mf, m=m: f"v_exp_f32 {m.s()}, {mf.s()}", m, [mf], "t")
        f = v1(lambda n, mf=mf: f"v_fract_f32 {n.d.s()}, {mf.s(1)}", [mf])
        c0 = g.op(lambda n, cs=cs, f=f: f"v_cos_f32 {cs.s()}, {f.s()}", cs, [f], "t")
        sg = "-" if R == 8 else ""
        c1 = g.op(lambda n, cs=cs, f=f: f"v_sin_f32 {cs.s(1)}, {f.s()}", None, [f], "t", after=[c0])
        g.op(lambda n, cs=cs, m=m, d=d: f"v_pk_mul_f32 {d.p()}, {cs.p()}, {m.p()} op_sel_hi:[1,0]", d, [cs, m], after=[c1])
        E[R] = d
    wa = []; wb = []
    def put(x, rows, lst, after=()):
        t = v1(lambda n: f"v_cvt_pk_bf16_f32 {n.d.s()}, {x.s()}, {x.s(1)}", [x], kind="c")
        for r in rows: lst.append(g.op(lambda n, r=r: f"ds_write_addtid_b32 {t.s()} offset:{r*272}", None, [t], "w", after=after))
    G0 = cmul(C, B, after=sh[4:6])
    E[2] = cmul(E[1], E[1]); E[4] = cmul(E[2], E[2])
    h = cmul(G0, E[256])
    put(G0, [mrow(0, 0)], wa)
    g1 = cmul(G0, E[1]); put(g1, [mrow(1, 0)], wa)
    ev, od = G0, g1
    for r in range(2, 8, 2):
        ev = cmul(ev, E[2]); put(ev, [mrow(r, 0)], wa)
        od = cmul(od, E[2]); put(od, [mrow(r + 1, 0)], wa)
    put(h, [mrow(0, 1), mrow(1, 1)], wa)
    x = cmul(h, E[2]); put(x, [mrow(2, 1)], wa)
    y = cmul(h, E[4]); put(y, [mrow(3, 1), mrow(4, 1), mrow(5, 1)], wa)
    x = cmul(y, E[2]); put(x, [mrow(6, 1)], wa)
    put(cmul(h, E[8]), [mrow(7, 1)], wa)
    for hf in range(2):
        h = cmul(h, E[256]); put(h, [mrow(8, hf)], wa)
        put(cmul(h, E[4]), [mrow(9, hf)], wa); put(cmul(h, E[8]), [mrow(10, hf)], wa)
    for qq in range(4):
        h = cmul(h, E[256]); put(h, [mrow(11 + 2 * (qq >> 1), qq & 1)], wa)
        put(cmul(h, E[8]), [mrow(12 + 2 * (qq >> 1), qq & 1)], wa)
    rd = [g.op(lambda n, ks=ks: f"ds_read_b128 v[{64+4*ks}:{67+4*ks}], v{vKR} offset:{32*ks}", None, [], "r", after=wa) for ks in range(8)]
    g.sec = 1
    one = v1(lambda n: f"v_mov_b32 {n.d.s()}, 0x3f80", [])
    wb.append(g.op(lambda n: f"ds_write_addtid_b32 {one.s()}", None, [one], "w", after=rd))
    F8 = V(2)
    g.op(lambda n: f"v_pk_mul_f32 {F8.p()}, {E[8].p()}, 1.0 op_sel_hi:[1,0] neg_hi:[1,0]", F8, [E[8]])
    put(F8, [1], wb, rd)
    F16 = cmul(F8, F8); put(F16, [2], wb, rd)
    ev, od = F16, F8
    for c in range(3, 32, 2):
        od = cmul(od, F16); put(od, [c], wb, rd)
        if c < 31: ev = cmul(ev, F16); put(ev, [c + 1], wb, rd)
    def emit(x):
        s = x.f(x)
        if x.kind == "w": a.lg(s)
        elif x.kind == "r": a.lg(s, "kA")
        else: a(s)
    return schedule(g, list(pool), lat, ltr, emit, mix, gap, rg, bk)
if __name__ == "__main__":
    import sys
    from asmlib import S
    a = S(); n = kgen_main(a, 58, *[int(x) for x in sys.argv[1:]])
    for o in a.ops: print(o.txt)
    print(n, len(a.ops))
```

```python
import sys, os, math, struct
sys.path.insert(0, os.path.dirname(os.path.abspath(__file__)))
from asmlib import S, interleave, resolve, fix_hazards, flatten
import kg as kgm

NAME = "gated_mix__ssm_conv_s4__glu_gated_bilinear__prompt"
KN = NAME + "_kernel"

T1F, T2F, AF, WS_G, HF = 0, 5120, 7680, 10240, 18432
WS_UT = 0x10000
WS_AT = 0x290000
ATP = 4352
WS_WD = 0x540000
WS_H = 0x760000
WS_STAMP = 0xF00000
WS_BYTES = 0x2000000
OOB = 0x7ff00000
SX, SWG, SWU, SWS, SOUT, SWD, SDBG, SGW = 4, 8, 12, 16, 20, 24, 28, 48
P_ARE, P_AIM, P_BRE, P_BIM, P_CRE, P_CIM, P_LDT, P_DSK = 32, 34, 36, 38, 40, 42, 44, 46
sWAVE = 3
sFT, sROW0, sLARGE, sIDX, sHW, sRB, sCT, sR, sT1S, sT1SL, sQ16, sU2 = range(52, 64)
sFJ = 64
def srd(n): return f"s[{n}:{n+3}]"
def sp(n): return f"s[{n}:{n+1}]"
def vr(a, n): return f"v[{a}:{a+n-1}]"
def fbits(x): return "0x%08x" % struct.unpack("<I", struct.pack("<f", x))[0]
LOG2E = 1.4426950408889634
vL16 = 1

LDS_BYTES = 163840
class Cfg:
    stamps = 0
    ilp = 0; lat = 2; ltr = 3; mix = 1; gap = 3; rg = 0; bk = 2
    sh = 0
    t2w = 0
    l2 = 0
    win = 8
    win2 = 8
    hp = 0
    hf = 3
    lw = 8
    lb = 4
    npre = 7
    ncl = 4
    hq = 20
    m9 = 10
    mp = 66
    pk = 1
    k0 = 55
    k1 = 95
    j0 = 5
    j1 = 50
    gs = 2
    s0n = 99
    lp = 99
    t2q = 40
    prio = 3
    prk = 1
    prg = 0
    slp = 4
    wt = [3, 3, 3, 3, 4, 4, 4]
    e0 = 0
    e1 = 100
    n8 = 6; n9 = 12; l8 = 8; l9 = 16
    ngc = 35; ng2 = 50
    rot = 1
    s0w = 0
    l0w = 0
    kc = 100
    ms = 2
    kw0 = 50
    hA = 1
    hop = 1
    nS = 99; nL = 99; nG = 99; gK = 1024
    gS = 4096; gL = 1024; gG = 4096
    cw = 1
    tch = 0
    ts0 = 2
    tp0 = -1; tp1 = 20; tp2 = 50; tp3 = 75; tp4 = 90
cfg = Cfg()

VST = 7
def stamp(a, i):
    if not cfg.stamps: return
    a(f"s_memtime s[94:95]\ns_waitcnt lgkmcnt(0)\nv_writelane_b32 v{VST}, s94, {i}")
def stamp_rt(a, i):
    if not cfg.stamps: return
    a(f"s_memrealtime s[94:95]\ns_waitcnt lgkmcnt(0)\nv_writelane_b32 v{VST}, s94, {i}")
def stamp_flush(a):
    if not cfg.stamps: return
    a(f"s_lshl_b32 s96, s2, 3\ns_add_u32 s96, s96, s{sWAVE}\ns_lshl_b32 s96, s96, 8\ns_add_u32 s96, s96, {WS_STAMP}")
    a(f"v_and_b32 v6, 63, v0\nv_lshlrev_b32 v6, 2, v6")
    a(f"buffer_store_dword v{VST}, v6, {srd(SWS)}, s96 offen")

uid = [0]
def newlab(p):
    uid[0] += 1; return f"L_{p}_{uid[0]}"
def mod5(a, s): a(f"s_cmp_ge_u32 s{s}, 5\ns_cselect_b32 s93, 5, 0\ns_sub_u32 s{s}, s{s}, s93")

def region(a, name): a.label(f"R_{name}")
def map1(a, t):
    a(f"s_and_b32 s82, s2, 1\ns_lshr_b32 s83, s80, 1\ns_lshl_b32 s{sROW0}, s82, 10\ns_mul_i32 s84, s83, 5\ns_mov_b32 s{sLARGE}, 1")
    a(f"s_cmp_lt_u32 s81, 25\ns_cbranch_scc0 L_map_k2{t}")
    a(f"s_sub_u32 s85, s81, 20\ns_mov_b32 s88, s85\ns_mul_i32 s86, s85, 192\ns_cbranch_scc0 L_map_col{t}")
    a(f"s_lshr_b32 s85, s81, 2\ns_and_b32 s86, s81, 3\ns_cmp_ge_u32 s86, s85\ns_cselect_b32 s87, 0x100, 0\ns_addc_u32 s88, s86, 0")
    a(f"s_mul_i32 s86, s86, 192\ns_add_u32 s86, s86, s87\ns_mov_b32 s{sLARGE}, 0")
    a.label(f"L_map_col{t}")
    a(f"s_add_u32 s{sFT}, s84, s85\ns_branch L_map_done{t}")
    a.label(f"L_map_k2{t}")
    a(f"s_mul_i32 s84, s83, 7\ns_add_u32 s84, s84, s81\ns_sub_u32 s84, s84, 25\ns_lshr_b32 s85, s84, 2\ns_add_u32 s{sFT}, s85, 20")
    a(f"s_and_b32 s88, s84, 3\ns_lshl_b32 s86, s88, 8")
    a.label(f"L_map_done{t}")
    a(f"s_add_u32 s{sROW0}, s{sROW0}, s86\ns_xor_b32 s84, s82, s83\ns_and_b32 s84, s84, 1\ns_mul_i32 s84, s84, 5")
    if cfg.rot == 1:
        a(f"s_add_u32 s{sR}, s85, s88"); mod5(a, sR); a(f"s_add_u32 s{sR}, s{sR}, s84")
    else: a(f"s_mov_b32 s{sR}, s84")
    a(f"s_mov_b32 s{SX+2}, 2621440\ns_mov_b32 s{SX+3}, 0x20000\ns_mov_b32 s{SWG+2}, 2211840\ns_mov_b32 s{SWG+3}, 0x20000")
    a(f"s_mov_b64 {sp(SWU+2)}, {sp(SWG+2)}\ns_movk_i32 s{SGW+2}, 1280\ns_mov_b32 s{SGW+3}, s{SX+3}")
def prologue(a):
    region(a, "P")
    if cfg.stamps: a("s_memrealtime s[98:99]\ns_memtime s[96:97]")
    a("s_cmp_ge_u32 s2, 256\ns_cbranch_scc1 L_end")
    a("s_load_dwordx16 s[32:47], s[0:1], 8")
    for d, o in ((SX, 0), (SWG, 80), (SWU, 88), (SGW, 104), (SWD, 96), (SWS, 128), (SDBG, 120), (SOUT, 112)):
        a(f"s_load_dwordx2 {sp(d)}, s[0:1], {o}")
    a(f"v_lshrrev_b32 v1, 6, v0\nv_and_b32 v2, 63, v0\nv_readfirstlane_b32 s{sWAVE}, v1\nv_lshlrev_b32 v{vL16}, 4, v2\ns_lshr_b32 s81, s2, 3")
    if cfg.cw:
        a(f"s_cmp_lg_u32 s{sWAVE}, 3\ns_cbranch_scc1 L_ncw\ns_getpc_b64 s[82:83]")
        a.label("L_pc")
        a("s_mul_i32 s84, s81, 52\ns_lshr_b32 s84, s84, 8\ns_mul_i32 s84, s84, 5\ns_sub_u32 s84, s81, s84\ns_lshl_b32 s84, s84, 13\nv_lshl_add_u32 v3, v2, 7, s84")
        a("v_min_u32 v3, L_end-L_pc, v3\nv_mov_b32 v5, s83\nv_add_co_u32 v4, vcc, s82, v3\nv_addc_co_u32 v5, vcc, 0, v5, vcc")
        a.unc("global_load_dword v63, v[4:5], off")
        a.label("L_ncw")
    a(f"s_and_b32 s80, s2, 7\ns_mul_i32 s{sIDX}, s80, 20\ns_add_u32 s{sIDX}, s{sIDX}, s81\ns_and_b32 s{sHW}, s{sWAVE}, 3")
    if cfg.stamps: a(f"v_mov_b32 v{VST}, 0")
    kgen_addr(a)
    map1(a, "")
    a(f"s_cmp_ge_u32 s81, 20\ns_waitcnt lgkmcnt(0)\ns_cbranch_scc1 L_nopar")
    kgen_issue(a)
    a.label("L_nopar")
    a(f"s_cmp_ge_u32 s{sWAVE}, 4\ns_cbranch_scc1 L_h0")
    if cfg.hop: a(f"s_cmp_eq_u32 s{sLARGE}, 1\ns_cbranch_scc1 L_hopL")
    if cfg.t2q == -2:
        if not cfg.hop: a(f"s_cmp_eq_u32 s{sLARGE}, 1\ns_cbranch_scc1 L_comp_large")
        t2_early(a)
    if cfg.hop:
        hops(a, "S")
        a.label("L_hopL")
        hops(a, "L")
        a.label("L_hret")
        a("s_mov_b64 exec, -1")
    a(f"s_cmp_eq_u32 s{sLARGE}, 1\ns_cbranch_scc1 L_comp_large\ns_branch L_comp")
    a.label("L_h0")
    loader_setup(a)
    if cfg.s0w and cfg.l0w: return
    if cfg.s0w or cfg.l0w: a(f"s_cmp_eq_u32 s{sLARGE}, {1 if cfg.l0w else 0}\ns_cbranch_scc1 L_nst0")
    stage0(a)
    a.label("L_nst0")
def t2_early(a):
    a(f"s_lshl3_add_u32 s{sU2}, s81, s80\ns_lshl2_add_u32 s{sU2}, s{sU2}, s{sHW}\ns_mov_b64 {sp(SWD+2)}, {sp(SWG+2)}")
    t2_src(a, sT2, (89, 90, 91, 92))
    for o in flatten(t2_loads().ops): a.unc(o.txt)
def map_ws(a): a(f"s_mov_b32 s{SWS+2}, {WS_BYTES}\ns_mov_b32 s{SWS+3}, 0x20000\ns_movk_i32 s{SDBG+2}, 256\ns_mov_b32 s{SDBG+3}, 0x20000")
def map2(a, ws=True):
    if cfg.stamps: a(f"v_writelane_b32 v{VST}, s98, 0\nv_writelane_b32 v{VST}, s96, 1")
    a(f"s_mov_b64 {sp(SOUT+2)}, {sp(SX+2)}\ns_mov_b64 {sp(SWD+2)}, {sp(SWG+2)}")
    if ws: map_ws(a)
    a(f"s_lshr_b32 s84, s81, 3\ns_lshl_b32 s{sRB}, s80, 2\ns_add_u32 s{sRB}, s{sRB}, s84\ns_and_b32 s{sCT}, s81, 7")
    a(f"s_lshl_b32 s{sU2}, s81, 3\ns_add_u32 s{sU2}, s{sU2}, s80\ns_lshl_b32 s{sU2}, s{sU2}, 2\ns_add_u32 s{sU2}, s{sU2}, s{sHW}")
    if cfg.rot == 1:
        a(f"s_sub_u32 s{sT1S}, s85, s88\ns_add_u32 s{sT1S}, s{sT1S}, 5"); mod5(a, sT1S)
    else: a(f"s_mov_b32 s{sT1S}, s85")
    a(f"s_mul_i32 s{sT1SL}, s82, 5\ns_add_u32 s{sT1SL}, s{sT1SL}, s88\ns_lshl_b32 s{sT1SL}, s{sT1SL}, 1\ns_lshr_b32 s86, s83, 1\ns_add_u32 s{sT1SL}, s{sT1SL}, s86")
    a(f"s_lshl_b32 s86, s85, 6\ns_sub_u32 s86, s86, 32\ns_cmp_eq_u32 s83, 0\ns_cselect_b32 s{sQ16}, s86, -1\ns_lshl_b32 s86, s85, 5")
    a(f"s_cmp_lt_u32 s81, 25\ns_cselect_b32 s{sT1S}, s{sT1S}, 63\ns_cselect_b32 s{sQ16}, s{sQ16}, s86\ns_cselect_b32 s{sT1SL}, s{sT1SL}, 0")
def hops(a, name):
    a("s_mov_b64 exec, 0")
    for w in range(3): a(f"s_cmp_eq_u32 s{sWAVE}, {w}\ns_cbranch_scc1 H_{name}{w}")
    a(f"s_branch H_{name}3")
def stop(a): a.label(newlab("STOP"))

def col_order(a, scale, base):
    a(f"s_and_b32 s80, s{sRB}, 15\ns_mul_i32 s80, s80, 11\ns_lshr_b32 s80, s80, 5\ns_min_u32 s80, s80, 4")
    for j in range(5):
        a(f"s_add_u32 s81, s80, {1+j}"); mod5(a, 81)
        a(f"s_mul_i32 s81, s81, {scale}\ns_add_u32 s{sFJ+j}, s81, s{base}")

SPIN = 40000
def spin(a, loads, test):
    L = newlab("poll"); D = newlab("pdone")
    a("s_mov_b32 s90, 0")
    a.label(L)
    for l in loads: a.unc(l)
    a.unc("s_waitcnt vmcnt(0)")
    a(test)
    a(f"s_cbranch_scc0 {D}")
    if cfg.slp: a(f"s_sleep {cfg.slp}")
    a(f"s_add_u32 s90, s90, 1\ns_cmp_lt_u32 s90, {SPIN}\ns_cbranch_scc1 {L}")
    a.label(D)
def check(a, tag, loads, test):
    D = newlab("ok"); g = S()
    g.wvm(tag); g(test); g(f"s_cbranch_scc0 {D}")
    spin(g, loads, test)
    g.label(D); a.atom(g)
def t_all(v): return f"v_cmp_ne_u32 vcc, 1, v{v}\ns_or_b32 s92, vcc_lo, vcc_hi"
sCLR = 32
def clear_stores(a):
    D = newlab("nclr"); n = 40 // cfg.ncl
    a(f"s_sub_u32 s89, s81, 20\ns_add_u32 s90, s80, s{sWAVE}\ns_cmp_eq_u32 s90, 0\ns_cselect_b32 s{sCLR}, s89, 63")
    a(f"s_cmp_lt_u32 s{sCLR}, {cfg.ncl}\ns_cbranch_scc0 {D}")
    a(f"v_mov_b64 v[16:17], 0\nv_mov_b64 v[18:19], 0\ns_mul_i32 s89, s{sCLR}, {n*1024}")
    for i in range(n):
        if i and i % 4 == 0: a("s_add_u32 s89, s89, 4096")
        a.unc(f"buffer_store_dwordx4 v[16:19], v{vL16}, {srd(SWS)}, s89 offen offset:{(i&3)*1024} sc1")
    a.label(D)
def signal_cleared(a):
    D = newlab("sig")
    a(f"s_cmp_lt_u32 s{sCLR}, {cfg.ncl}\ns_cbranch_scc0 {D}")
    a(f"s_waitcnt vmcnt(0)\nv_mov_b32 v18, 0\nv_mov_b32 v19, 1\ns_lshl_b32 s80, s{sCLR}, 2\ns_mov_b64 exec, 1")
    a.unc(f"buffer_store_dword v19, v18, {srd(SDBG)}, s80 offen sc1")
    a("s_mov_b64 exec, -1")
    a.label(D)

ACC1 = 128; CACC = 224
F_A = (64, 88); F_B = (72, 96)
vA1 = 8; vB1 = 9
vHF, vCA0, vCB0, vHS, vAS = 13, 14, 15, 16, 17
sHA = 76
sT1FL, sT1FS = 44, 45
HC = 24
def g1_reads(nt, ks, buf):
    ag = F_A[buf]; bb = F_B[buf]; o = ks * 2048
    seq = [f"ds_read_b64_tr_b16 {vr(ag,2)}, v{vA1} offset:{o}",
           f"ds_read_b64_tr_b16 {vr(ag+2,2)}, v{vA1} offset:{o+512}",
           f"ds_read_b128 {vr(bb,4)}, v{vB1+ks}",
           f"ds_read_b64_tr_b16 {vr(ag+4,2)}, v{vA1} offset:{o+8192}",
           f"ds_read_b64_tr_b16 {vr(ag+6,2)}, v{vA1} offset:{o+8192+512}"]
    seq += [f"ds_read_b128 {vr(bb+4*t,4)}, v{vB1+ks} offset:{4096*t}" for t in range(1, nt)]
    return seq
def g1_mfmas(nt, buf, zero=False):
    ag = F_A[buf]; bb = F_B[buf]; m = []
    for t in range(nt):
        for gu in range(2):
            c = ACC1 + 32 * t + 16 * gu
            m.append(f"v_mfma_f32_32x32x16_bf16 {vr(c,16)}, {vr(ag+4*gu,4)}, {vr(bb+4*t,4)}, {0 if zero else vr(c,16)}")
    return m
def phase(a, mf, rd, extra=()):
    rd = list(rd); extra = list(extra)
    for i, m in enumerate(mf):
        a(m)
        for _ in range(2):
            if rd: a(rd.pop(0))
            elif extra and i >= 3: a(extra.pop(0))
    for x in rd + extra: a(x)

KOFF = 97088; KST = 16704; KCH = 4160; UOFF = 61440; UCH = 4608
def g1_setup(a, nt):
    rw = 32 * nt; slot = (2 * rw) * 128 + 16384; xb = 2 * rw * 128
    a(f"s_lshr_b32 s70, s{sWAVE}, 1\ns_and_b32 s71, s{sWAVE}, 1")
    a(f"v_and_b32 v3, 31, v2\nv_lshrrev_b32 v4, 5, v2")
    a(f"v_lshrrev_b32 v5, 1, v3\nv_and_b32 v5, 7, v5\nv_xor_b32 v5, v5, v4\nv_lshlrev_b32 v5, 4, v5")
    a(f"s_mul_i32 s80, s70, {rw*128}\nv_lshlrev_b32 v3, 7, v3\nv_add3_u32 v{vB1}, v3, v5, s80")
    for ks in range(1, 4): a(f"v_xor_b32 v{vB1+ks}, {32*ks}, v{vB1}")
    a(f"v_lshlrev_b32 v3, 3, v4\nv_bfe_u32 v5, v2, 2, 2\nv_add_u32 v3, v3, v5\nv_lshlrev_b32 v3, 7, v3")
    a(f"v_bfe_u32 v5, v2, 3, 1\nv_xor_b32 v5, s71, v5\nv_lshlrev_b32 v5, 6, v5\nv_add_u32 v3, v3, v5")
    a(f"v_bfe_u32 v5, v2, 4, 1\nv_lshlrev_b32 v5, 5, v5\nv_add_u32 v3, v3, v5\nv_and_b32 v5, 3, v2\nv_lshlrev_b32 v5, 3, v5")
    a(f"s_mov_b32 s80, {xb}\nv_add3_u32 v{vA1}, v3, v5, s80")
    if nt == 3:
        for i in range(0, 32, 2): a(f"v_mov_b64 {vr(CACC+i,2)}, 0")
    a(f"s_mov_b32 s72, 0\ns_mov_b32 s73, 1\ns_mov_b32 s74, {slot}\ns_mov_b32 s75, {slot}")
    a(f"s_add_u32 s85, s{sR}, s{sT1S}\ns_cmp_ge_u32 s85, 10\ns_cselect_b32 s86, 10, 0\ns_sub_u32 s85, s85, s86\ns_lshl_b32 s85, s85, 2\ns_add_u32 s85, s85, s{sHW}")
    a(f"s_lshl_b32 s85, s85, 7\ns_lshl_b32 s86, s{sT1SL}, 2\ns_add_u32 s85, s85, s86\ns_add_u32 s{sT1FL}, s85, {T1F}\ns_add_u32 s{sT1FS}, s{sT1S}, {3 if nt == 4 and cfg.l2 else 2}")
    a(f"v_bfe_u32 v3, v2, 4, 1\nv_lshlrev_b32 v3, 10, v3\nv_lshrrev_b32 v4, 5, v2\nv_lshlrev_b32 v4, 9, v4\nv_and_b32 v5, 15, v2\nv_lshlrev_b32 v5, 4, v5\nv_add3_u32 v{vHS}, v3, v4, v5")
    a(f"s_lshl_b32 s80, s{sFT}, 1\ns_add_u32 s80, s80, s71\ns_lshl_b32 s81, s80, 12\ns_add_u32 s81, s81, {WS_H}")
    a(f"s_mul_i32 s82, s70, {nt}\ns_lshr_b32 s83, s{sROW0}, 5\ns_add_u32 s82, s82, s83")
    a(f"s_lshl_b32 s84, s82, 8\ns_lshl_b32 s80, s80, 2\ns_add_u32 s84, s84, s80\ns_add_u32 s{sT1SL}, s84, {HF}")
    for t in range(nt):
        a(f"s_lshr_b32 s83, s82, 1\ns_mul_i32 s83, s83, 221184\ns_and_b32 s84, s82, 1\ns_lshl_b32 s84, s84, 11\ns_add_u32 s83, s83, s84\ns_add_u32 s{sHA+t}, s83, s81\ns_add_u32 s82, s82, 1")
    a(f"s_mul_i32 s69, s{sRB}, 221184\ns_lshl_b32 s80, s70, 12\ns_add_u32 s69, s69, s80\ns_lshl_b32 s80, s71, 11\ns_add_u32 s69, s69, s80\ns_add_u32 s69, s69, {WS_H}")
    col_order(a, 8192, 69)
    a(f"s_add_u32 s80, s80, 1\nv_lshrrev_b32 v3, 2, v2\nv_add_u32 v3, s80, v3\nv_subrev_u32 v4, 5, v3\nv_cmp_gt_u32 vcc, 5, v3\nv_cndmask_b32 v3, v4, v3, vcc")
    a(f"v_and_b32 v4, 3, v2\nv_mad_u32_u24 v3, v4, 5, v3\nv_min_u32 v4, 26, v2\nv_cmp_gt_u32 vcc, 20, v2\nv_cndmask_b32 v3, v4, v3, vcc\nv_lshlrev_b32 v3, 3, v3")
    a(f"s_lshl_b32 s80, s{sRB}, 1\ns_add_u32 s80, s80, s71\ns_lshl_b32 s80, s80, 8\ns_lshl_b32 s81, s70, 2\ns_add_u32 s80, s80, s81\ns_add_u32 s80, s80, {HF}\nv_add_u32 v{vHF}, s80, v3")
    if nt == 3:
        a(f"s_mul_i32 s80, s{sWAVE}, {KCH}\ns_add_u32 s80, s80, {KOFF+472-448}\ns_mul_i32 s81, s{sWAVE}, {UCH}\ns_add_u32 s81, s81, {UOFF+512-32-448}")
        a(f"v_and_b32 v3, 3, v2\nv_mul_u32_u24 v3, {KST}, v3\nv_bfe_u32 v4, v2, 2, 2\nv_lshlrev_b32 v4, 3, v4\nv_sub_u32 v3, v3, v4")
        a(f"v_lshrrev_b32 v4, 4, v2\nv_lshlrev_b32 v5, 4, v4\nv_add3_u32 v{vCA0}, v3, v5, s80")
        a(f"v_and_b32 v3, 15, v2\nv_lshlrev_b32 v3, 5, v3\nv_add3_u32 v{vCB0}, v3, v5, s81")
        a(f"v_bfe_u32 v4, v2, 4, 1\nv_lshlrev_b32 v4, 9, v4\nv_lshrrev_b32 v5, 5, v2\nv_lshlrev_b32 v5, 4, v5\nv_add3_u32 v{vAS}, v3, v4, v5")

def hstore(t, i): return f"buffer_store_dwordx4 {vr(HC+8*t+4*i,4)}, v{vHS}, {srd(SWS)}, s{sHA+t} offen offset:{256*i} sc1"
def g1_loop(a, nt, tag, first=()):
    rw = 32 * nt; slot = (2 * rw) * 128 + 16384
    stamp(a, 2)
    a("s_barrier")
    stamp(a, 3)
    for x in g1_reads(nt, 0, 0): a(x)
    a("s_waitcnt lgkmcnt(0)")
    phase(a, g1_mfmas(nt, 0, True), g1_reads(nt, 1, 1), first)
    a(f"s_branch L_g1b_{tag}")
    g1_flags(a, nt, tag)
    a.label(f"L_g1_{tag}")
    if nt == 3:
        a("s_cmp_eq_u32 s72, 2\ns_cbranch_scc1 L_f2")
        a.label("L_f2r")
        if cfg.kc < 100 and cfg.ms != 2:
            a(f"s_cmp_eq_u32 s72, {cfg.ms}\ns_cbranch_scc1 L_f3")
            a.label("L_f3r")
    a(f"s_cmp_eq_u32 s72, s{sT1FS}\ns_cbranch_scc1 L_f1_{tag}")
    a.label(f"L_f1r_{tag}")
    a(f"s_add_u32 s73, s73, 1\ns_cmp_eq_u32 s73, 3\ns_cselect_b32 s75, {(-2*slot) & 0xffffffff}, s74\ns_cselect_b32 s73, 0, s73")
    a("s_waitcnt lgkmcnt(0)")
    phase(a, g1_mfmas(nt, 0), g1_reads(nt, 1, 1))
    a.label(f"L_g1b_{tag}")
    a("s_waitcnt lgkmcnt(0)")
    phase(a, g1_mfmas(nt, 1), g1_reads(nt, 2, 0))
    a("s_waitcnt lgkmcnt(0)")
    phase(a, g1_mfmas(nt, 0), g1_reads(nt, 3, 1), [f"v_add_u32 v{vA1+i}, s75, v{vA1+i}" for i in range(5)])
    a(f"s_cmp_eq_u32 s72, 9\ns_waitcnt lgkmcnt(0)\ns_cbranch_scc1 L_g1_nb{tag}\ns_barrier")
    a.label(f"L_g1_nb{tag}")
    phase(a, g1_mfmas(nt, 1), g1_reads(nt, 0, 0), ["s_add_u32 s72, s72, 1", "s_cmp_lt_u32 s72, 10"])
    a(f"s_cbranch_scc1 L_g1_{tag}")
    stamp(a, 4)
    a.reset()
    for t in range(nt):
        g = ACC1 + 32 * t; u = g + 16; o = HC + 8 * t
        for i in range(0, 16, 2): a(f"v_pk_mul_f32 {vr(g+i,2)}, {vr(g+i,2)}, {vr(u+i,2)}")
        for i in range(8): a(f"v_cvt_pk_bf16_f32 v{o+i}, v{g+2*i}, v{g+2*i+1}")
        if nt == 4 or not cfg.hp:
            for i in range(2):
                if nt == 4:
                    if 2 * t + i == cfg.lb: a("s_waitcnt lgkmcnt(0)\ns_barrier")
                    a.win(cfg.lw - 1)
                a(hstore(t, i))
    if nt == 4 and cfg.lb >= 8: a("s_waitcnt lgkmcnt(0)\ns_barrier")
    stamp(a, 5)
def g1_flags(a, nt, tag):
    if nt == 3:
        def hand():
            a.unc(f"v_add_u32 v18, s89, v{vL16}")
            for i in range(4): a.unc(f"ds_write_b128 v18, {vr(KP+4*i,4)} offset:{40960+1024*i}")
        a.label("L_f2")
        if cfg.kc < 100 and cfg.ms == 2: hand()
        a.unc("s_waitcnt vmcnt(0)")
        for l in one_flag(sT2 + 1): a.unc(l)
        a("s_branch L_f2r")
        if cfg.kc < 100 and cfg.ms != 2:
            a.label("L_f3"); hand(); a("s_branch L_f3r")
    a.label(f"L_f1_{tag}")
    for l in one_flag(sT1FL): a.unc(l)
    a(f"s_branch L_f1r_{tag}")
def h_flag(a, nt):
    a(f"v_lshlrev_b32 v18, 8, v2\nv_mov_b32 v19, 1\ns_mov_b64 exec, {(1<<nt)-1}")
    a.unc(f"buffer_store_dword v19, v18, {srd(SWS)}, s{sT1SL} offen sc1")
    a("s_mov_b64 exec, -1")
HPOLL = f"buffer_load_dword v18, v{vHF}, {srd(SWS)}, 0 offen sc1"
T_EARLY = "v_cmp_ne_u32 vcc, 1, v18\ns_and_b32 s92, vcc_lo, 0xfff"
T_LATE = "v_cmp_ne_u32 vcc, 1, v18\ns_and_b32 s92, vcc_lo, 0x7ffffff"

E1, E8, E256, E2, E4 = 30, 34, 38, 42, 46
GA, GB, GH, GH2 = 50, 52, 54, 56
vKR = 58; KP = 48; KSC = 8704
def cmul(a, d, x, y, conj=False):
    if cfg.pk:
        a(f"v_pk_mul_f32 {vr(d,2)}, {vr(x,2)}, {vr(y,2)} op_sel:[0,0] op_sel_hi:[0,1]" + (" neg_hi:[0,1]" if conj else ""))
        a(f"v_pk_fma_f32 {vr(d,2)}, {vr(x,2)}, {vr(y,2)}, {vr(d,2)} op_sel:[1,1,0] op_sel_hi:[1,0,1]" + ("" if conj else " neg_lo:[0,1,0]"))
        return
    im, nim = (y + 2, y + 1) if conj else (y + 1, y + 2)
    a(f"v_mul_f32 v{d}, v{x}, v{y}\nv_mul_f32 v{d+1}, v{x}, v{im}\nv_fmac_f32 v{d}, v{x+1}, v{nim}\nv_fmac_f32 v{d+1}, v{x+1}, v{y}")
pk = [0]
def put(a, x, rows):
    t = 28 + (pk[0] & 1); pk[0] += 1
    a(f"v_cvt_pk_bf16_f32 v{t}, v{x}, v{x+1}")
    for r in rows: a.lg(f"ds_write_addtid_b32 v{t} offset:{r*272}")
def mrow(r, hf): return 8 * (r >> 2) + 4 * hf + (r & 3)
def kgen_addr(a):
    a(f"s_lshl2_add_u32 s89, s{sIDX}, s{sHW}\ns_lshl_b32 s90, s89, 1\ns_lshr_b32 s91, s{sWAVE}, 2\ns_add_u32 s91, s91, s90\ns_lshl_b32 s91, s91, 7")
    a(f"v_lshl_add_u32 v4, v2, 1, s91\nv_mov_b32 v5, s90")
def kgen_issue(a):
    a.unc(f"global_load_ushort v26, v5, {sp(P_LDT)}")
    for i, p in enumerate((P_ARE, P_AIM, P_BRE, P_BIM, P_CRE, P_CIM)):
        a.unc(f"global_load_ushort v{20+i}, v4, {sp(p)} nt")
    a.unc(f"global_load_ushort v27, v5, {sp(P_DSK)}")
def kgen(a, mid=None, tail=None, top=True):
    a(f"s_mul_i32 s81, s{sHW}, {KSC}\ns_add_u32 s89, s81, {122880 if top else 81920}\ns_mov_b32 m0, s89")
    a(f"v_and_b32 v4, 31, v2\nv_mul_u32_u24 v4, 272, v4\nv_lshrrev_b32 v5, 5, v2\nv_lshlrev_b32 v5, 4, v5\nv_add3_u32 v{vKR}, v4, v5, s89")
    if cfg.ilp:
        kgm.kgen_pre(a); kgm.kgen_main(a, vKR, cfg.lat, cfg.ltr, cfg.mix, cfg.gap, cfg.rg, cfg.bk)
        if cfg.stamps > 2: stamp(a, 40); stamp(a, 41); stamp(a, 42)
        return kgen_tail(a, tail)
    hi = struct.unpack("<f", struct.pack("<f", LOG2E))[0]; lo = LOG2E - hi
    a(f"v_lshlrev_b32 v26, 16, v26\ns_mov_b32 s83, {fbits(hi)}")
    a(f"v_mul_f32 v3, s83, v26\nv_fma_f32 v4, v26, s83, -v3\nv_fmac_f32 v4, {fbits(lo)}, v26\nv_exp_f32 v3, v3")
    a(f"v_mul_f32 v4, {fbits(math.log(2.0))}, v4\nv_fmac_f32 v3, v3, v4\nv_cvt_pk_bf16_f32 v3, v3, v3\nv_lshlrev_b32 v26, 16, v3")
    for i in range(6): a(f"v_lshlrev_b32 v{20+i}, 16, v{20+i}")
    for i in range(4): a(f"v_mul_f32 v{20+i}, v26, v{20+i}")
    for (E, R) in ((E1, 1), (E8, 8), (E256, 256)):
        a(f"v_mul_f32 v3, {fbits(R*LOG2E)}, v20\nv_mul_f32 v4, {fbits(R/(2*math.pi))}, v21\nv_exp_f32 v3, v3\nv_fract_f32 v4, v4")
        a(f"v_cos_f32 v5, v4\nv_sin_f32 v6, v4\nv_mul_f32 v{E}, v3, v5\nv_mul_f32 v{E+1}, v3, v6")
        if not cfg.pk or E == E8: a(f"v_sub_f32 v{E+2}, 0, v{E+1}")
    a(f"v_mul_f32 v{GA}, v24, v22\nv_mul_f32 v{GA+1}, v24, v23\nv_fma_f32 v{GA}, -v25, v23, v{GA}\nv_fmac_f32 v{GA+1}, v25, v22")
    cmul(a, E2, E1, E1)
    if not cfg.pk: a(f"v_sub_f32 v{E2+2}, 0, v{E2+1}")
    cmul(a, E4, E2, E2)
    if not cfg.pk: a(f"v_sub_f32 v{E4+2}, 0, v{E4+1}")
    cmul(a, GH, GA, E256)
    if cfg.stamps > 2: stamp(a, 40)
    put(a, GA, [mrow(0, 0)])
    cur, oth = GA, GB
    for r in range(1, 8):
        cmul(a, oth, cur, E1); cur, oth = oth, cur
        put(a, cur, [mrow(r, 0)])
    put(a, GH, [mrow(0, 1), mrow(1, 1)])
    cmul(a, GA, GH, E2); put(a, GA, [mrow(2, 1)])
    cmul(a, GB, GA, E2); put(a, GB, [mrow(3, 1), mrow(4, 1), mrow(5, 1)])
    cmul(a, GA, GB, E2); put(a, GA, [mrow(6, 1)])
    cmul(a, GB, GH, E8); put(a, GB, [mrow(7, 1)])
    h, h2 = GH, GH2
    for hf in range(2):
        cmul(a, h2, h, E256); h, h2 = h2, h
        put(a, h, [mrow(8, hf)])
        cmul(a, GA, h, E4); put(a, GA, [mrow(9, hf)])
        cmul(a, GB, h, E8); put(a, GB, [mrow(10, hf)])
    for q in range(4):
        cmul(a, h2, h, E256); h, h2 = h2, h
        put(a, h, [mrow(11 + 2 * (q >> 1), q & 1)])
        cmul(a, GA, h, E8); put(a, GA, [mrow(12 + 2 * (q >> 1), q & 1)])
    for ks in range(8): a.lg(f"ds_read_b128 {vr(64+4*ks,4)}, v{vKR} offset:{32*ks}", "kA")
    if cfg.stamps > 2: stamp(a, 41)
    if mid: mid(a)
    g = S(); g(f"v_mov_b32 v3, 0x3f80"); g.lg(f"ds_write_addtid_b32 v3"); a.atom(g)
    a(f"v_mov_b32 v{GA}, v{E8}\nv_mov_b32 v{GA+1}, v{E8+2}")
    put(a, GA, [1])
    cur, oth = GA, GB
    for c in range(2, 32):
        cmul(a, oth, cur, E8, conj=True); cur, oth = oth, cur
        put(a, cur, [c])
    if cfg.stamps > 2: stamp(a, 42)
    kgen_tail(a, tail)
def kgen_tail(a, tail):
    for ks in range(8): a.lg(f"ds_read_b128 {vr(96+4*ks,4)}, v{vKR} offset:{32*ks}", f"kB{ks}")
    for ks in range(8):
        a.wlg(f"kB{ks}")
        a(f"v_mfma_f32_32x32x16_bf16 {vr(KP,16)}, {vr(64+4*ks,4)}, {vr(96+4*ks,4)}, {vr(KP,16) if ks else 0}")
        if tail: a.add(tail[ks])

vXO = 8; vWO = 16
sSX, sSW, sKB, sLX, sLW = 70, 71, 72, 73, 74
sT1A, sGA = 75, 78
v3A, v3X, v3W, v3S, v3T, vGW = 200, 204, 236, 242, 208, 248
v1A, v1S, v2G, v2T, vDA, vDD = 249, 251, 160, 161, 254, 255
vF1, vF2, vKW, vUW, vUL, vZ = 216, 218, 221, 222, 223, 224
sUA, sT2 = 32, 34
KACC = 96; KX = 128; UREG = 200; T1D = 36; T2R = 128; T2D = 32
def loader_setup(a):
    a(f"s_lshl_b32 s89, s{sLARGE}, 1\ns_add_u32 s89, s89, 6\ns_mul_i32 s90, s89, s{sHW}\ns_lshl_b32 s{sLX}, s90, 10\ns_lshl3_add_u32 s90, s90, s{sROW0}\ns_mul_i32 s90, s90, 1280")
    a(f"v_lshrrev_b32 v3, 3, v2\nv_and_b32 v4, 7, v2\nv_lshrrev_b32 v5, 4, v2\nv_xor_b32 v5, v4, v5\nv_lshlrev_b32 v5, 4, v5")
    a(f"v_mul_u32_u24 v6, 1280, v3\nv_add3_u32 v{vXO}, v6, v5, s90\nv_xor_b32 v{vXO+1}, 64, v{vXO}")
    for j in range(2, 8):
        a(f"v_add_u32 v{vXO+j}, {8 * j * 1280 - (j & 3) * 1024}, v{vXO + (j & 1)}")
    a(f"v_add_u32 v{vXO+1}, {8*1280-1024}, v{vXO+1}")
    a(f"v_bfe_u32 v5, v2, 4, 1\nv_lshlrev_b32 v5, 2, v5\nv_xor_b32 v5, v4, v5\nv_lshlrev_b32 v5, 4, v5")
    a(f"s_mul_i32 s90, s{sHW}, {16*3456}\ns_lshl_b32 s91, s{sFT}, 7\ns_add_u32 s90, s90, s91")
    a(f"v_mul_u32_u24 v6, 3456, v3\nv_add3_u32 v{vWO}, v6, v5, s90\nv_add_u32 v{vWO+1}, {8*3456-1024}, v{vWO}")
    a(f"s_lshl1_add_u32 s89, s89, s{sHW}\ns_lshl_b32 s{sLW}, s89, 11\ns_lshl_b32 s{sSX}, s{sR}, 7\ns_mul_i32 s{sSW}, s{sSX}, 1728")
    a(f"v_and_b32 v{vGW}, 15, v2\nv_lshlrev_b32 v{vGW}, 3, v{vGW}")
def stage0(a):
    def x(j): a.unc(f"buffer_load_dwordx4 v{vXO+j}, {srd(SX)}, s{sSX} offen offset:{(j&3)*1024} lds")
    assert cfg.s0n in (2, 4, 6, 99)
    a(f"s_mov_b32 m0, s{sLX}\ns_cmp_eq_u32 s{sLARGE}, 0")
    for j in range(6):
        if j == cfg.s0n: a("s_cbranch_scc1 L_nst0")
        if j == 4: a(f"s_add_u32 m0, s{sLX}, 4096\ns_cmp_eq_u32 s{sLARGE}, 0")
        x(j)
    a("s_cbranch_scc1 L_st0w" if cfg.s0n > 6 else "s_cbranch_scc1 L_nst0")
    x(6); x(7)
    a.unc(f"buffer_load_dwordx2 {vr(v3W, 2)}, v{vGW}, {srd(SGW)}, s{sSX} offen")
    a.label("L_st0w")
    for w, sr in enumerate((SWG, SWU)):
        a(f"s_add_u32 m0, s{sLW}, {w*8192}\ns_nop 0")
        a.unc(f"buffer_load_dwordx4 v{vWO}, {srd(sr)}, s{sSW} offen lds")
        a.unc(f"buffer_load_dwordx4 v{vWO+1}, {srd(sr)}, s{sSW} offen offset:1024 lds")
    a(f"s_add_u32 s{sSX}, s{sSX}, 128\ns_cmp_eq_u32 s{sSX}, 1280\ns_cselect_b32 s{sSX}, 0, s{sSX}")
def g1_dmas(nt, stage):
    nx = 2 * nt; slot = (64 * nt) * 128 + 16384; sb = (stage % 3) * slot; tag = f"st{stage}"
    r = S()
    def grp(*lines):
        g = S()
        for l in lines:
            if l.startswith("buffer_"): g.vm(l, tag)
            else: g(l)
        r.atom(g)
    adv = [f"s_add_u32 s{sSX}, s{sSX}, 128", f"s_cmp_eq_u32 s{sSX}, 1280", f"s_cselect_b32 s{sSX}, 0, s{sSX}"] if stage < 9 else []
    for j in range(nx):
        if j == 0: grp(f"s_add_u32 m0, s{sLX}, {sb}", f"s_mul_i32 s{sSW}, s{sSX}, 1728")
        elif j == 4: grp(f"s_add_u32 m0, s{sLX}, {sb + 4096}")
        grp(f"buffer_load_dwordx4 v{vXO+j}, {srd(SX)}, s{sSX} offen offset:{(j&3)*1024} lds")
    for w, sr in enumerate((SWG, SWU)):
        grp(f"s_add_u32 m0, s{sLW}, {sb + w*8192}")
        grp(f"buffer_load_dwordx4 v{vWO}, {srd(sr)}, s{sSW} offen lds")
        if w == 0 and nt == 3: grp(*adv)
        grp(f"buffer_load_dwordx4 v{vWO+1}, {srd(sr)}, s{sSW} offen offset:1024 lds")
    if nt == 4: grp(f"buffer_load_dwordx2 {vr(v3W + 2*(stage%3), 2)}, v{vGW}, {srd(SGW)}, s{sSX} offen", *adv)
    return r
def side_a(a, nt):
    a(f"v_min_u32 v{vDA}, {cfg.ncl-1}, v2\nv_lshlrev_b32 v{vDA}, 2, v{vDA}")
    if nt == 3: return
    slot = (64 * nt) * 128 + 16384
    a(f"s_max_i32 s80, s{sQ16}, 0\ns_lshl_b32 s81, s{sHW}, 3\ns_add_u32 s80, s80, s81")
    a(f"v_lshrrev_b32 v3, 4, v2\nv_add_u32 v3, s80, v3\nv_lshrrev_b32 v4, 1, v3\nv_lshrrev_b32 v5, 1, v2\nv_xor_b32 v4, v4, v5\nv_and_b32 v4, 7, v4\nv_lshlrev_b32 v4, 4, v4")
    a(f"v_lshlrev_b32 v3, 7, v3\nv_and_b32 v5, 1, v2\nv_lshlrev_b32 v5, 3, v5\nv_add3_u32 v{v3A}, v3, v4, v5\nv_xor_b32 v3, 32, v{v3A}\nv_add_u32 v{v3A+1}, 512, v3")
    a(f"v_add_u32 v{v3A+2}, {2*slot}, v{v3A}\nv_add_u32 v{v3A+3}, {2*slot}, v{v3A+1}\nv_mov_b32 v{v3S}, 0\nv_mov_b32 v{v3S+1}, 0")
    a(f"s_add_u32 s80, s80, s{sROW0}\ns_lshl_b32 s80, s80, 2\ns_add_u32 s80, s80, {WS_G}\ns_cmp_ge_i32 s{sQ16}, 0\ns_cselect_b32 s{sGA}, s80, {OOB}")
def atoms(f, *args):
    t = S(); f(t, *args); return t
def side_b(a, nt):
    t3, t4, t5, t6 = 228, 229, 230, 231
    a(f"s_and_b32 s84, s{sT1SL}, 1\ns_mul_i32 s84, s84, {32*nt}")
    a(f"v_lshrrev_b32 v{t3}, 4, v2\nv_bfe_u32 v{t4}, v2, 2, 2\nv_lshl_add_u32 v{t5}, v{t3}, 3, v{t4}\nv_add_u32 v{t5}, s84, v{t5}\nv_lshlrev_b32 v{t5}, 7, v{t5}")
    a(f"v_lshrrev_b32 v{t4}, 1, v{t4}\nv_and_b32 v{t6}, 1, v{t3}\nv_lshl_or_b32 v{t4}, v{t6}, 2, v{t4}\nv_bfe_u32 v{t6}, v2, 1, 1\ns_lshl_b32 s85, s{sHW}, 1\nv_or_b32 v{t6}, s85, v{t6}\nv_xor_b32 v{t4}, v{t4}, v{t6}")
    a(f"v_lshlrev_b32 v{t4}, 4, v{t4}\nv_and_b32 v{t6}, 1, v2\nv_lshlrev_b32 v{t6}, 3, v{t6}\nv_add3_u32 v{v1A}, v{t5}, v{t4}, v{t6}\nv_xor_b32 v{t4}, 32, v{v1A}\nv_add_u32 v{v1A+1}, 512, v{t4}")
    a(f"v_and_b32 v{t4}, 15, v2\nv_lshlrev_b32 v{t4}, 6, v{t4}\nv_lshl_add_u32 v{v1S}, v{t3}, 4, v{t4}")
    g = S(); g(f"s_add_u32 s85, s{sR}, s{sT1S}\ns_cmp_ge_u32 s85, 10\ns_cselect_b32 s86, 10, 0\ns_sub_u32 s85, s85, s86"); a.atom(g)
    a(f"s_lshl_b32 s85, s85, 2\ns_add_u32 s85, s85, s{sHW}")
    a(f"s_lshl_b32 s86, s85, 16\ns_add_u32 s84, s84, s{sROW0}\ns_lshl_b32 s84, s84, 5\ns_add_u32 s86, s86, s84\ns_add_u32 s{sT1A}, s86, {WS_UT}")
def side_c(a, nt):
    t3 = 228
    a(f"s_mul_i32 s80, s{sCT}, 5\ns_lshr_b32 s80, s80, 2\ns_lshl_b32 s80, s80, 8\ns_add_u32 s80, s80, {T2F}\nv_min_u32 v{t3}, 53, v2\nv_lshlrev_b32 v{t3}, 2, v{t3}\nv_add_u32 v{vF2}, s80, v{t3}")
    a(f"s_mul_i32 s69, s{sCT}, 276480\ns_and_b32 s80, s{sHW}, 1\ns_mul_i32 s80, s80, 5120\ns_add_u32 s69, s69, s80\ns_add_u32 s69, s69, {WS_WD}")
    a(f"s_lshr_b32 s82, s{sHW}, 1\ns_mul_i32 s83, s82, 51200\ns_add_u32 s89, s83, s69\ns_mul_i32 s82, s82, 10240\ns_add_u32 s69, s69, s82")
    g = S(); col_order(g, 10240, 89)
    ops = g.ops; t = S(); t.ops = ops[:4]; a.atom(t)
    for j in range(5):
        t = S(); t.ops = ops[4 + 6 * j: 10 + 6 * j]; a.atom(t)
    if nt == 3:
        a(f"s_lshr_b32 s81, s{sIDX}, 2\ns_lshl_b32 s81, s81, 7\nv_min_u32 v{t3}, 19, v2\nv_lshlrev_b32 v{t3}, 2, v{t3}\nv_add_u32 v{vF1}, s81, v{t3}")
        a(f"s_mul_i32 s81, s{sHW}, {KCH}\ns_add_u32 s81, s81, {KOFF+1008}\nv_sub_u32 v{vKW}, s81, v{vL16}\ns_mul_i32 s81, s{sHW}, {UCH}\ns_add_u32 s81, s81, {UOFF+512}\nv_add_u32 v{vUW}, s81, v{vL16}")
        for i in range(2): a(f"v_mov_b64 {vr(vZ+2*i,2)}, 0")
        a(f"s_and_b32 s81, s{sIDX}, 3\ns_lshl_b32 s81, s81, 2\ns_add_u32 s81, s81, s{sHW}\ns_lshl_b32 s81, s81, 6\ns_lshr_b32 s82, s{sIDX}, 2\ns_lshl_b32 s82, s82, 16\ns_add_u32 s81, s81, s82\ns_add_u32 s{sUA}, s81, {WS_UT}")
        a(f"v_lshrrev_b32 v{t3}, 2, v2\nv_lshlrev_b32 v{t3}, 10, v{t3}\nv_and_b32 v{vUL}, 3, v2\nv_lshl_add_u32 v{vUL}, v{vUL}, 4, v{t3}")
def t3_read(a, s):
    slot = 49152; k = s % 3
    for i in range(2): a.lg(f"ds_read_b64 {vr(v3X+2*i,2)}, v{v3A + i + 2 * (k >> 1)} offset:{(k & 1) * slot}", "t3")
def t3_step(s):
    a = S(); w = v3W + 2 * (s % 3); wl = v3T; t = v3T + 2
    for i in range(2): a(f"v_lshlrev_b32 v{wl+i}, 16, v{w+i}\nv_and_b32 v{w+i}, 0xffff0000, v{w+i}")
    a.wlg("t3")
    for r in range(2):
        for i in range(2):
            x = v3X + 2 * r + i
            a(f"v_lshlrev_b32 v{t}, 16, v{x}\nv_and_b32 v{x}, 0xffff0000, v{x}\nv_mul_f32 v{t}, v{t}, v{wl+i}\nv_mul_f32 v{x}, v{x}, v{w+i}")
            a(f"v_cvt_pk_bf16_f32 v{t}, 0, v{t}\nv_cvt_pk_bf16_f32 v{x}, 0, v{x}\nv_add_f32 v{v3S+r}, v{v3S+r}, v{t}\nv_add_f32 v{v3S+r}, v{v3S+r}, v{x}")
    return a
def t3_final():
    a = S(); x = v3S
    for m in ("quad_perm:[1,0,3,2]", "quad_perm:[2,3,0,1]", "row_half_mirror", "row_mirror"):
        for r in range(2): a(f"v_add_f32_dpp v{x+r}, v{x+r}, v{x+r} {m} row_mask:0xf bank_mask:0xf")
    a(f"v_and_b32 v3, 15, v2\nv_cmp_eq_u32 vcc, 1, v3\nv_cndmask_b32 v{x}, v{x}, v{x+1}, vcc")
    a(f"v_cvt_pk_bf16_f32 v{x}, 0, v{x}\nv_mul_f32 v{x}, {fbits(-LOG2E)}, v{x}\nv_exp_f32 v{x}, v{x}")
    a(f"v_add_f32 v{x}, 1.0, v{x}\nv_rcp_f32 v{x}, v{x}\nv_cvt_pk_bf16_f32 v{x}, 0, v{x}")
    a(f"v_sub_f32 v{x+1}, 1.0, v{x}\nv_cvt_pk_bf16_f32 v{x}, v{x}, v{x+1}")
    a(f"v_lshrrev_b32 v4, 4, v2\nv_lshlrev_b32 v4, 2, v4\nv_lshl_add_u32 v4, v3, 4, v4\nv_cmp_gt_u32 vcc, 2, v3\nv_mov_b32 v3, {OOB}\nv_cndmask_b32 v3, v3, v4, vcc")
    a.vm(f"buffer_store_dword v{x}, v3, {srd(SWS)}, s{sGA} offen sc1", "gst")
    return a
def cond(a, sreg, val, body):
    D = newlab("c"); g = S()
    g(f"s_cmp_eq_u32 s{sreg}, {val}\ns_cbranch_scc0 {D}")
    for l in body: g.unc(l)
    g.label(D); a.atom(g)
def t1_reads(a, nt, s):
    sb = (s % 3) * ((64 * nt) * 128 + 16384)
    b = [f"v_add_u32 v3, {sb}, v{v1A}", f"v_add_u32 v4, {sb}, v{v1A+1}"]
    T1D = t1d(nt)
    for j in range(nt):
        for rd in range(2): b.append(f"ds_read_b64_tr_b16 {vr(T1D+4*j+2*rd,2)}, v{3+rd} offset:{4096*j}")
    cond(a, sT1S, s, b)
def t1d(nt): return UREG if nt == 3 else T1D
def t1_stores(a, nt, s):
    T1D = t1d(nt)
    cond(a, sT1S, s, ["s_waitcnt lgkmcnt(0)"] + [f"buffer_store_dwordx4 {vr(T1D+4*j,4)}, v{v1S}, {srd(SWS)}, s{sT1A} offen offset:{1024*j} sc1" for j in range(nt)])
def one_flag(sreg): return ["v_mov_b32 v18, 0", "v_mov_b32 v19, 1", "s_mov_b64 exec, 1", f"buffer_store_dword v19, v18, {srd(SWS)}, s{sreg} offen sc1", "s_mov_b64 exec, -1"]
DBGL = f"buffer_load_dword v{vDD}, v{vDA}, {srd(SDBG)}, 0 offen sc1"
def t2_loads(R=sT2):
    r = S()
    for i in range(4):
        g = S()
        if i: g(f"s_add_u32 s{R}, s{R}, 10240")
        g.vm(f"buffer_load_dwordx4 {vr(T2R+4*i,4)}, v{v2G}, {srd(SWD)}, s{R} offen nt", "t2"); r.atom(g)
    return r
def t2_kd(a, k=84, d=85): a(f"s_mul_i32 s{k}, s{sU2}, 6554\ns_lshr_b32 s{k}, s{k}, 16\ns_mul_i32 s{d}, s{k}, 10\ns_sub_u32 s{d}, s{sU2}, s{d}")
def t2_src(a, R, t=(84, 85, 86, 87)):
    t2_kd(a, t[0], t[1])
    a(f"s_mul_i32 s{t[2]}, s{t[0]}, {32*1280}\ns_lshl_b32 s{t[3]}, s{t[1]}, 7\ns_add_u32 s{t[2]}, s{t[2]}, s{t[3]}\ns_cmp_lt_u32 s{sU2}, 540\ns_cselect_b32 s{R}, s{t[2]}, {OOB}")
    a(f"v_lshrrev_b32 v3, 3, v2\nv_mul_u32_u24 v3, 1280, v3\nv_and_b32 v6, 7, v2\nv_lshl_add_u32 v{v2G}, v6, 4, v3")
def t2_issue(a):
    R = sT2; u = sU2
    if cfg.t2q < -1: t2_kd(a)
    else: t2_src(a, R)
    if cfg.t2q == -1: a.add(t2_loads())
    a(f"s_lshl_b32 s86, s85, 8\ns_lshl_b32 s87, s84, 2\ns_add_u32 s86, s86, s87\ns_add_u32 s{R+1}, s86, {T2F}")
    a(f"s_lshl_b32 s85, s85, 2\ns_mul_i32 s87, s85, 52\ns_lshr_b32 s87, s87, 8\ns_mul_i32 s88, s87, 5\ns_sub_u32 s86, s85, s88\ns_sub_u32 s{R+4}, 5, s86")
    a(f"s_mul_i32 s87, s87, 276480\ns_lshl_b32 s86, s86, 10\ns_add_u32 s86, s86, s87\ns_mul_i32 s84, s84, 5120\ns_add_u32 s86, s86, s84\ns_add_u32 s86, s86, {WS_WD}")
    a(f"s_cmp_lt_u32 s{u}, 540\ns_cselect_b32 s{R+1}, s{R+1}, {OOB}\ns_cselect_b32 s{R+2}, s86, {OOB}\ns_add_u32 s{R+3}, s{R+2}, {276480-5120}")
    for q in range(1, 4): a(f"s_cmp_le_u32 s{R+4}, {q}\ns_cselect_b32 s{R+5+q}, s{R+3}, s{R+2}")
    a(f"v_bfe_u32 v3, v2, 4, 1\nv_lshlrev_b32 v3, 4, v3\nv_lshrrev_b32 v4, 5, v2\nv_lshlrev_b32 v4, 2, v4\nv_bfe_u32 v5, v2, 2, 2\nv_add3_u32 v3, v3, v4, v5")
    a(f"v_lshlrev_b32 v3, 7, v3\nv_and_b32 v4, 3, v2\nv_lshl_add_u32 v{v2T}, v4, 3, v3")
def t2_lds():
    r = []
    for i in range(4):
        g = S()
        if i == 0: g(f"v_add_u32 v{v2G}, s89, v{vL16}\nv_add_u32 v{v2T}, s89, v{v2T}"); g.wvm("t2")
        g.lg(f"ds_write_b128 v{v2G}, {vr(T2R+4*i,4)} offset:{1024*i}"); r.append(g)
    for q in range(4):
        g = S()
        for rd in range(2): g.lg(f"ds_read_b64_tr_b16 {vr(T2D+4*q+2*rd,2)}, v{v2T} offset:{rd*1024+q*32}", f"t2a{q}")
        r.append(g)
    return r
def t2_stores():
    R = sT2
    return [f"buffer_store_dwordx4 {vr(T2D+4*q,4)}, v{vL16}, {srd(SWS)}, s{R+5+q if q else R+2} offen offset:{q*1024} sc1" for q in range(4)]
def k_merge():
    a = S()
    a(f"s_mul_i32 s80, s{sHW}, {KSC}\ns_add_u32 s80, s80, 122880\nv_add_u32 v5, s80, v{vL16}")
    for i in range(4): a.lg(f"ds_read_b128 {vr(KACC+4*i,4)}, v5 offset:{1024*i}", "km")
    a("v_lshlrev_b32 v27, 16, v27\nv_cmp_eq_u32 vcc, 0, v2\nv_cndmask_b32 v27, 0, v27, vcc")
    a(f"v_add_f32 v{KP}, v{KP}, v27")
    a.wlg("km")
    for i in range(16): a(f"v_add_f32 v{KACC+i}, v{KACC+i}, v{KP+i}")
    return a
def k_expand():
    a = S(); K = KACC
    def cv(d, x, y): a(f"v_cvt_pk_bf16_f32 v{d}, v{x}, v{y}")
    for P in range(4):
        d = KX + 18 * P
        if P == 0:
            for i in range(4): cv(d + i, K + 7 - 2 * i, K + 6 - 2 * i)
        elif P == 1:
            x = K + 8; cv(d, x + 2, x + 2); cv(d + 1, x + 1, x + 1); cv(d + 2, x + 1, x); cv(d + 3, x, x)
        else:
            x = K + 11 + 2 * (P - 2)
            g = S(); g(f"v_and_b32 v5, 1, v2\nv_cmp_eq_u32 vcc, 1, v5\nv_cndmask_b32 v5, v{x}, v{x+1}, vcc\nv_cvt_pk_bf16_f32 v{d+1}, v{x+1}, v5"); a.atom(g)
            cv(d, x + 1, x + 1); cv(d + 2, x, x); cv(d + 3, x, x)
    for P in range(4):
        d = KX + 18 * P
        for i in range(2):
            if P == 0: a(f"v_mov_b32_dpp v{d+4+i}, v{d+i} wave_shr:1 row_mask:0xf bank_mask:0xf bound_ctrl:0")
            else: a(f"v_mov_b32_dpp v{d+4+i}, v{d-18+i} wave_ror:1 row_mask:0xf bank_mask:0xf")
        for i in range(3): a(f"v_mov_b32 v{d+14+i}, v{d+1+i}")
        if P:
            for i in range(2): a(f"v_mov_b32_dpp v{d+4+i}, v{d+i} wave_shr:1 row_mask:0xf bank_mask:0xf")
        for i in range(4): a(f"v_alignbit_b32 v{d+6+i}, v{d+i+1}, v{d+i}, 16")
        for i in range(4): a(f"v_alignbit_b32 v{d+10+i}, v{d+i+2}, v{d+i+1}, 16")
        a(f"v_mov_b32 v{d+17}, v{d+4}")
    return a
def k_writes(a, copies):
    for c in copies:
        r = {3: 0, 2: 6, 0: 10, 1: 14}[c]
        for P in range(4): a.lg(f"ds_write_b128 v{vKW}, {vr(KX+18*P+r,4)} offset:{(3-P)*1024 + c*KST}")
def split(s, n):
    k = len(s.ops); out = []
    for i in range(n):
        r = S(); r.ops = s.ops[k * i // n: k * (i + 1) // n]; out.append(r)
    return out
vL16B = 16
def wreg(m, p): return 36 + 20 * (m - 3) + 4 * p
def wd_addr(a, m, s):
    if m < 10: a(f"s_add_u32 s{s}, s{sFJ + (m >> 1)}, {(m & 1) * 102400}")
    elif m < 13: a(f"s_add_u32 s{s}, s69, {m * 20480}")
    else: a(f"s_lshr_b32 s{s}, s{sHW}, 1\ns_mul_i32 s{s}, s{s}, 10240\ns_sub_u32 s{s}, s69, s{s}\ns_add_u32 s{s}, s{s}, {26 * 10240}")
def wd_loads(lo, hi, win):
    r = S()
    for k in range(lo, hi):
        m = 3 + k // 5; p = k % 5; g = S()
        if p == 0 or k == lo: wd_addr(g, m, 87)
        if win: g.win(win)
        g.vm(f"buffer_load_dwordx4 {vr(wreg(m,p),4)}, v{vL16 if p < 4 else vL16B}, {srd(SWS)}, s87 offen offset:{(p&3)*1024} sc1", f"w{k}")
        r.atom(g)
    return r
def wd_dma(a):
    a(f"s_mul_i32 s82, s{sHW}, 5120")
    for m in range(3):
        wd_addr(a, m, 80)
        a(f"s_add_u32 m0, s82, {m*20480}")
        for p in range(4):
            a.win(cfg.win)
            a.vm(f"buffer_load_dwordx4 v{vL16}, {srd(SWS)}, s80 offen offset:{p*1024} sc1 lds", "P0")
        a(f"s_add_u32 m0, s82, {m*20480+4096}")
        a.win(cfg.win)
        a.vm(f"buffer_load_dwordx4 v{vL16B}, {srd(SWS)}, s80 offen sc1 lds", "P0")
F1L = [f"buffer_load_dword v{vF1+1}, v{vF1}, {srd(SWS)}, 0 offen sc1"]
F2L = [f"buffer_load_dword v{vF2+1}, v{vF2}, {srd(SWS)}, 0 offen sc1", f"buffer_load_dword v{vF2+2}, v{vF2}, {srd(SWS)}, 0 offen offset:256 sc1"]
T_F2 = f"v_and_b32 v{vF2+1}, v{vF2+1}, v{vF2+2}\n" + t_all(vF2 + 1)

def spread(main, side, p0, p1):
    n = len(main.ops); k = len(side.ops); r = S()
    pos = [(k * p0) // 100 + ((k * (p1 - p0)) // 100) * i // max(n - 1, 1) for i in range(n)]
    mi = 0
    for i in range(k + 1):
        while mi < n and pos[mi] <= i: r.ops.append(main.ops[mi]); mi += 1
        if i < k: r.ops.append(side.ops[i])
    r.ops += main.ops[mi:]
    return r
def helper_g1(a, nt):
    small = nt == 3
    n8, n9 = (cfg.n8, cfg.n9) if small else (cfg.l8, cfg.l9)
    a.seed(["par"] * 8 + ["st0"] * (0 if cfg.s0w else min(cfg.s0n, 10)) if small else ["st0"] * (0 if cfg.l0w else 13))
    def cut(stage, n):
        ops = g1_dmas(nt, stage).ops; k = 0; h = S(); m0 = None
        while ops and (k < n or not any(x.kind == "vm" or "m0" in x.txt for x in ops[0].arg)):
            o = ops.pop(0); h.ops.append(o); k += sum(x.kind == "vm" for x in o.arg)
            for x in o.arg:
                if "m0" in x.txt: m0 = x
        t = S()
        if ops and m0 is not None and not any("m0" in x.txt for x in ops[0].arg):
            g = S(); g.ops = [m0]; t.atom(g)
        t.ops += ops
        return h, t
    if cfg.prio: a(f"s_setprio {cfg.prk}")
    if cfg.stamps == 2: stamp(a, 51)
    side_a(a, nt); side_b(a, nt)
    if not small: side_c(a, nt)
    if (cfg.s0w == 1 if small else cfg.l0w): a.add(g1_dmas(nt, 0))
    if cfg.stamps == 2: stamp(a, 52)
    if small:
        a.wvm("par"); stamp(a, 16)
        if cfg.s0w == 2: a.add(g1_dmas(nt, 0))
        hyb = cfg.kc < 100
        kg = S(); kgen(kg, top=hyb)
        rest = S(); rest.ops = kg.ops[len(kg) * cfg.kc // 100:]; kg.ops = kg.ops[:len(kg) * cfg.kc // 100]
        def grouped(items):
            d = S(); cur = []; m0 = None; n = 0
            def flush():
                g = S(); g.ops = cur; g("s_mov_b32 m0, s89"); d.atom(g)
            for o in items.ops:
                mine = [x for x in o.arg if "m0" in x.txt]
                if (mine or n == cfg.gs) and cur:
                    flush(); cur = [] if mine else [m0]; n = 0
                if mine: m0 = mine[0]
                cur = cur + o.arg; n += sum(x.kind == "vm" for x in o.arg)
            flush()
            return d
        n = len(kg); kg = interleave(grouped(g1_dmas(nt, 1)), kg, n * cfg.k0 // 100, n * cfg.k1 // 100)
        if cfg.s0n < 10 and not cfg.s0w: kg = interleave(grouped(cut(0, cfg.s0n)[1]), kg, n * cfg.j0 // 100, n * cfg.j1 // 100)
        a.add(kg)
        if not hyb: a("s_waitcnt lgkmcnt(0)")
        region(a, "SH")
    else:
        h1, t1r = cut(1, cfg.lp)
        a.add(h1)
        if cfg.l2: a.add(g1_dmas(nt, 2))
    if cfg.stamps == 2: stamp(a, 53)
    if cfg.prk != cfg.prg: a(f"s_setprio {cfg.prg}")
    stamp(a, 2)
    late = S()
    if small and not hyb: late.add(k_expand()); late.add(atoms(side_c, nt))
    wt = cfg.wt; cuts = [len(late) * sum(wt[:i]) // sum(wt) for i in range(8)]
    if small: assert (hyb or cuts[6] > len(k_expand()) + 5) and n9 <= 23
    if small and hyb:
        ms = cfg.ms; n0 = len(rest) * cfg.kw0 // 100
        hs = [rest.ops[:n0]] + [rest.ops[n0 + (len(rest) - n0) * i // (ms - 1): n0 + (len(rest) - n0) * (i + 1) // (ms - 1)] for i in range(ms - 1)]
        hs.append(atoms(side_c, nt).ops)
        ex = k_merge().ops + k_expand().ops; m = 7 - ms
        hs += [ex[len(ex) * i // m: len(ex) * (i + 1) // m] for i in range(m)]
    assert cfg.ngc >= max(15, n9) and cfg.ng2 >= max(30, cfg.ngc) and n9 <= 41 and cfg.hp <= cfg.hf
    for s in range(10):
        if cfg.stamps == 2: stamp(a, 20 + 3 * s)
        a.wvm(f"st{s}")
        if s == 2: check(a, "dbg", [DBGL], t_all(vDD))
        if cfg.stamps == 2: stamp(a, 21 + 3 * s)
        a("s_barrier")
        if cfg.stamps == 2: stamp(a, 22 + 3 * s)
        if s == 0: stamp(a, 3)
        if s == 8: stamp(a, 5)
        t1 = ((1 <= s <= 4) if small else s == 0) if cfg.rot == 1 else s <= 4
        if not small: t3_read(a, s)
        if t1: t1_reads(a, nt, s)
        if s == 0: a.vm(DBGL, "dbg")
        if s == 7:
            for l in F2L: a.vm(l, "f2")
        if s < 8:
            sd = S()
            if not small: sd.add(t3_step(s))
            if small and hyb: sd.ops += hs[s]
            else:
                if small and s == 0: sd.add(k_merge())
                if s >= 1: sd.ops += late.ops[cuts[s - 1]:cuts[s]]
            mid = S()
            if t1: t1_stores(mid, nt, s)
            k = (len(sd) * cfg.mp) // 100
            sd.ops = sd.ops[:k] + mid.ops + sd.ops[k:]
            if s == 0 and not small and cfg.l2: a.add(sd)
            else:
                d = g1_dmas(nt, s + 2)
                if small and hyb and any("addtid" in o.txt for o in flatten(sd.ops)): d = grouped(d)
                if s == 0 and not small: d.ops = t1r.ops + d.ops
                last = d.ops.pop()
                a.add(spread(d, sd, cfg.e0, cfg.e1)); a.ops.append(last)
            if s == 7: a(f"v_add_u32 v{vL16B}, 4096, v{vL16}")
        elif s == 8:
            if small: a.vm(F1L[0], "f1")
            check(a, "f2", F2L, T_F2)
            stamp(a, 7)
            sd = S()
            if small: k_writes(sd, (3, 2))
            else: sd.add(t3_step(s))
            a.add(spread(wd_loads(0, n8, 0), sd, 0, 90))
        else:
            sd = S()
            if small:
                check(a, "f1", F1L, t_all(vF1 + 1))
                for i in range(4):
                    if i: a(f"s_add_u32 s{sUA}, s{sUA}, 16384")
                    a.vm(f"buffer_load_dwordx4 {vr(UREG+4*i,4)}, v{vUL}, {srd(SWS)}, s{sUA} offen sc1", "ut")
                stamp(a, 6)
                k_writes(sd, (0, 1))
                sd(f"v_bfe_u32 v3, v2, 1, 2\nv_mul_u32_u24 v3, {KST}, v3\nv_and_b32 v4, 1, v2\nv_lshlrev_b32 v4, 4, v4\ns_mul_i32 s80, s{sHW}, {KCH}\ns_add_u32 s80, s80, {KOFF+4096}\nv_add3_u32 v3, v3, v4, s80")
                sd.lg(f"ds_write_b128 v3, {vr(vZ,4)}")
                sd(f"v_and_b32 v4, 0x1f0, v{vL16}\nv_sub_u32 v4, v4, v{vL16}\nv_add_u32 v4, v4, v{vUW}\nv_subrev_u32 v4, 512, v4")
                sd.lg(f"ds_write_b128 v4, {vr(vZ,4)}")
                m9 = min(max(cfg.m9, n8), n9)
                a.add(spread(wd_loads(n8, m9, cfg.win), sd, 30, 100))
                a.wvm("ut")
                for i in range(4): a.lg(f"ds_write_b128 v{vUW}, {vr(UREG+4*i,4)} offset:{i*1024}")
                a.add(wd_loads(m9, n9, cfg.win))
            else:
                sd.add(t3_step(s)); sd.add(t3_final())
                a.add(spread(wd_loads(n8, n9, cfg.win), sd, 0, 130))
    stamp(a, 8)
    a("s_waitcnt lgkmcnt(0)\ns_barrier")
    stamp(a, 9)
    wd_dma(a)
    a.add(wd_loads(n9, cfg.ngc, cfg.win))
    a.wvm("P0")
    stamp(a, 10)

CA = (64, 128); CB_ = (96, 160)
def conv_reads(ph):
    A, B = CA[ph & 1], CB_[ph & 1]; o = 64 * (7 - ph); r = []
    for i in range(8):
        r.append(f"ds_read_b64 {vr(A+4*i,2)}, v{vCA0} offset:{(7-i)*512+o}")
        r.append(f"ds_read_b64 {vr(A+4*i+2,2)}, v{vCA0} offset:{(7-i)*512+o+8}")
        r.append(f"ds_read_b128 {vr(B+4*i,4)}, v{vCB0} offset:{i*512+o}")
    return r
def conv_mfmas(buf):
    A, B = CA[buf], CB_[buf]; m = []
    for tau in range(8):
        for x in range(tau + 1):
            c = CACC + 4 * tau
            m.append(f"v_mfma_f32_16x16x32_bf16 {vr(c,4)}, {vr(A+4*x,4)}, {vr(B+4*(tau-x),4)}, {vr(c,4)}")
    return m
vHA, vHB = 10, 11
def hblk(n):
    n = n % 20
    return 16 + 8 * n if n < 6 else (192 + 8 * (n - 6) if n < 10 else (144 + 8 * (n - 10) if n < 16 else 224 + 8 * (n - 16)))
def hload(n):
    b = hblk(n)
    s = f"s_add_u32 s80, s{sFJ + (n >> 2)}, {(n & 3) * 40960}" if n < 20 else f"s_add_u32 s80, s69, {n * 8192}"
    return [s, f"buffer_load_dwordx4 {vr(b,4)}, v{vHA}, {srd(SWS)}, s80 offen sc1", f"buffer_load_dwordx4 {vr(b+4,4)}, v{vHB}, {srd(SWS)}, s80 offen sc1"]
def hoff_setup(a):
    a(f"s_lshl_b32 s80, s70, 10\nv_add_u32 v{vHA}, s80, v{vL16}\nv_xor_b32 v{vHB}, 1024, v{vHA}")
def conv(a):
    hoff_setup(a)
    a(f"s_lshl_b32 s82, s{sIDX}, 2\ns_add_u32 s82, s82, s{sWAVE}\ns_lshl_b32 s79, s82, 2\ns_add_u32 s79, s79, {AF}\ns_mul_i32 s82, s82, {ATP}\ns_add_u32 s72, s82, {WS_AT}")
    a("s_waitcnt lgkmcnt(0)\ns_barrier")
    stamp(a, 6)
    for x in conv_reads(0): a(x)
    st = [hstore(t, i) for t in range(3) for i in range(2)] if cfg.hp else []
    for ph in range(8):
        if ph == cfg.hf:
            a("s_waitcnt vmcnt(0)"); h_flag(a, 3); stamp(a, 16)
        a("s_waitcnt lgkmcnt(0)")
        if ph == 7: a("s_barrier")
        fill = {i: [] for i in range(36)}
        if ph < 7:
            for i, x in enumerate(conv_reads(ph + 1)): fill[i].append(x)
        else:
            g = S(); g2_first(g)
            for i, o in enumerate(g.ops): fill[2 * i].append(o.txt)
        if ph < cfg.hp:
            mine = st[6 * ph // cfg.hp: 6 * (ph + 1) // cfg.hp]
            for i, x in enumerate(mine): fill[(36 * i + 12) // len(mine)].append(x)
        for i, x in enumerate(conv_mfmas(ph & 1)):
            a(x)
            for y in fill[i]: a(y)
            if ph == 7 and i == cfg.hq: a.vm(HPOLL, "hp0")
    stamp(a, 7)
    for pp in range(4):
        r = 144 + 4 * pp; c = CACC + 8 * pp
        for i in range(4): a(f"v_cvt_pk_bf16_f32 v{r+i}, v{c+2*i}, v{c+2*i+1}")
        a(f"v_permlane16_swap_b32 v{r}, v{r+2}\nv_permlane16_swap_b32 v{r+1}, v{r+3}")
        a(f"buffer_store_dwordx4 {vr(r,4)}, v{vAS}, {srd(SWS)}, s72 offen offset:{pp*1024} sc1")
    check(a, "hp0", [HPOLL], T_EARLY)
    stamp(a, 18)
    for n in range(cfg.npre):
        for x in hload(n): a(x)

HALF = 61440; XCH = 122880; ATILE = 143360
ACC2 = 64; A2 = (104, 124); vA2 = 8
def areads(n):
    v = vA2 + ((n // 6) & 1); o = (n % 6) * 10240
    return [f"ds_read_b128 {vr(A2[n&1]+4*p,4)}, v{v} offset:{o+p*1024}" for p in range(5)]
def g2_first(a):
    a(f"s_mul_i32 s80, s70, 5120\nv_add_u32 v{vA2}, s80, v{vL16}\nv_add_u32 v{vA2+1}, {HALF}, v{vA2}")
    for x in areads(0): a(x)
def helper_g2(a):
    a.label("L_help_g2"); stop(a)
    a.seed([f"w{k}" for k in range(cfg.ngc)])
    a(f"s_mul_i32 s80, s{sHW}, 5120\nv_add_u32 v8, s80, v{vL16}\nv_add_u32 v9, {HALF}, v8")
    a(f"s_mul_i32 s80, s{sCT}, 320\ns_add_u32 s80, s80, {AF}\nv_min_u32 v3, 19, v2\nv_lshlrev_b32 v3, 4, v3\nv_add_u32 v11, s80, v3")
    a(f"v_lshrrev_b32 v3, 3, v2\nv_mul_u32_u24 v3, {ATP}, v3\nv_and_b32 v4, 7, v2\nv_lshl_add_u32 v10, v4, 4, v3")
    a(f"s_mul_i32 s70, s{sCT}, {80*ATP}\ns_lshl_b32 s81, s{sRB}, 7\ns_add_u32 s70, s70, s81\ns_add_u32 s70, s70, {WS_AT}")
    a("s_barrier")
    stamp(a, 11)
    AFL = [f"buffer_load_dwordx4 v[12:15], v11, {srd(SWS)}, 0 offen sc1"]
    T_AF = "v_and_b32 v12, v12, v13\nv_and_b32 v14, v14, v15\nv_and_b32 v12, v12, v14\n" + t_all(12)
    def atile():
        for i in range(3):
            a(f"s_add_u32 s81, s{sHW}, {4*i}\ns_min_u32 s81, s81, 9\ns_lshl_b32 s82, s81, 10\ns_add_u32 m0, s82, {ATILE}\ns_mul_i32 s81, s81, {8*ATP}\ns_add_u32 s81, s81, s70")
            a.unc(f"buffer_load_dwordx4 v10, {srd(SWS)}, s81 offen sc1 lds")
    for P, ms in enumerate(((3, 4, 5), (6, 7, 8), (9, 10, 11), (12, 13)), 1):
        a.wvm(f"w{5 * (ms[-1] - 2) - 1}")
        if P == 4: a.vm(AFL[0], "af")
        wr = S()
        for m in ms:
            for p in range(5): wr.lg(f"ds_write_b128 v{8 + (P & 1)}, {vr(wreg(m,p),4)} offset:{(m % 3) * 20480 + p * 1024}")
        ld = wd_loads(cfg.ngc, cfg.ng2, cfg.win) if P == 1 else (wd_loads(cfg.ng2, 55, cfg.win2) if P == 2 else S())
        a.add(spread(ld, wr, 0, max(100, 100 * len(ld) // 5)))
        a("s_waitcnt lgkmcnt(0)")
        if P == 4:
            a.wvm("af"); a(T_AF); a("s_cselect_b32 s71, 1, 0\ns_cbranch_scc1 L_at_late")
            atile()
            a.label("L_at_late")
        a("s_barrier")
    a("s_cmp_eq_u32 s71, 0\ns_cbranch_scc1 L_at_done")
    spin(a, AFL, T_AF)
    atile()
    a.label("L_at_done")
    stamp(a, 12)
    a("s_waitcnt vmcnt(0)\ns_barrier")
    stamp(a, 13)

def gemm2_compute(a):
    a.label("L_comp_g2"); stop(a)
    NPRE = cfg.npre; NCHK = 12 - NPRE
    a.seed([f"h{n}" for n in range(NPRE) for _ in range(2)])
    a(f"s_lshl_b32 s72, s71, 1\ns_add_u32 s72, s72, s70\ns_lshl_b32 s80, s{sRB}, 2\ns_add_u32 s73, s80, s72")
    a(f"s_lshl_b32 s74, s73, 6\ns_add_u32 s74, s74, {WS_G}")
    stamp(a, 8)
    GL = f"buffer_load_dword v15, v14, {srd(SWS)}, s74 offen sc1"
    T_G = "v_cmp_eq_u32 vcc, 0, v15\ns_or_b32 s92, vcc_lo, vcc_hi"
    misc = []
    misc += f"v_and_b32 v14, 15, v2\nv_lshlrev_b32 v14, 2, v14".split("\n")
    misc += f"s_mul_i32 s81, s{sWAVE}, 5120\ns_add_u32 s81, s81, {XCH}\nv_add_u32 v12, s81, v{vL16}".split("\n")
    misc += f"v_lshrrev_b32 v4, 4, v2\nv_lshlrev_b32 v5, 2, v4\nv_bfe_u32 v6, v2, 2, 2\nv_add_u32 v5, v5, v6\nv_lshlrev_b32 v5, 7, v5\nv_and_b32 v6, 3, v2\nv_lshlrev_b32 v6, 3, v6".split("\n")
    misc += f"s_lshl_b32 s81, s72, 5\ns_add_u32 s81, s81, {ATILE}\nv_add3_u32 v3, v5, v6, s81".split("\n")
    misc += f"v_and_b32 v5, 15, v2\nv_mul_u32_u24 v5, 1280, v5\nv_lshl_add_u32 v4, v4, 3, v5\nv_bfe_u32 v6, v2, 4, 1\nv_lshl_add_u32 v5, v6, 5, v5\nv_lshrrev_b32 v6, 5, v2\nv_lshl_add_u32 v5, v6, 4, v5".split("\n")
    misc += f"s_mul_i32 s75, s73, {16*1280}\ns_mul_i32 s81, s{sCT}, 160\ns_add_u32 s75, s75, s81".split("\n")
    for n in range(27):
        bar = n % 6 == 5
        if bar: a("s_waitcnt lgkmcnt(0)\ns_barrier")
        elif n == 0: a("s_waitcnt lgkmcnt(0)")
        else: a.wlg(f"a{n}_1")
        if n == NCHK:
            check(a, "hp", [HPOLL.replace("v18", "v6")], T_LATE.replace("v18", "v6"))
            stamp(a, 9)
            g = S(); g("v_mov_b32 v5, 0\nv_mov_b32 v6, 1\ns_mov_b64 exec, 1")
            g.vm(f"buffer_store_dword v6, v5, {srd(SWS)}, s79 offen sc1", "afl"); g("s_mov_b64 exec, -1"); a.atom(g)
        a.wvm(f"h{n}")
        b = hblk(n); A = A2[n & 1]
        def mf(p, tg):
            c = ACC2 + 20 * tg + 4 * p
            return f"v_mfma_f32_16x16x32_bf16 {vr(c,4)}, {vr(A+4*p,4)}, {vr(b+4*tg,4)}, {vr(c,4) if n else 0}"
        if n < 26:
            rd = areads(n + 1); hl = hload(n + NPRE) if n + NPRE < 27 else []
            fill = {k: [] for k in range(10)}
            for p in range(5): fill[p].append(("lg", rd[p], f"a{n+1}_{p}"))
            if hl:
                fill[5].append(("i", hl[0], None)); fill[6].append(("vm", hl[1], f"h{n+NPRE}")); fill[8].append(("vm", hl[2], f"h{n+NPRE}"))
            if n == NCHK - 4: fill[9].append(("vm", HPOLL.replace("v18", "v6"), "hp"))
            if n == 20: fill[6].append(("vm", GL, "gate"))
            if n > NCHK:
                for k in (5, 7, 9):
                    if misc: fill[k].append(("i", misc.pop(0), None))
            k = 0
            for p in range(5):
                if p == 2 and not bar and n: a.wlg(f"a{n}_4")
                for tg in range(2):
                    a(mf(p, tg))
                    for kind, txt, tag in fill[k]:
                        if kind == "lg": a.lg(txt, tag)
                        elif kind == "vm": a.vm(txt, tag)
                        else: a(txt)
                    k += 1
        else:
            a("s_waitcnt lgkmcnt(0)")
            for p in range(5): a(mf(p, 1))
            for p in range(5):
                a(mf(p, 0))
                a(f"ds_write_b128 v12, {vr(ACC2+20+4*p,4)} offset:{p*1024}")
    assert not misc
    stamp(a, 10)
    a(f"s_xor_b32 s81, s{sWAVE}, 2\ns_mul_i32 s81, s81, 5120\ns_add_u32 s81, s81, {XCH}\nv_add_u32 v12, s81, v{vL16}")
    check(a, "gate", [GL], T_G)
    a("v_lshlrev_b32 v14, 16, v15\nv_and_b32 v15, 0xffff0000, v15")
    a("s_waitcnt lgkmcnt(0)\ns_barrier")
    stamp(a, 11)
    for p in range(5):
        a.lg(f"ds_read_b128 {vr(104+4*p,4)}, v12 offset:{p*1024}", f"x{p}")
        a.lg(f"ds_read_b64_tr_b16 {vr(124+2*p,2)}, v3 offset:{p*2048}", f"x{p}")
    for p in range(5):
        a.wlg(f"x{p}")
        c = ACC2 + 4 * p; o = 104 + 4 * p; t = 124 + 2 * p; r = 16 + 2 * p
        for i in range(4): a(f"v_add_f32 v{c+i}, v{c+i}, v{o+i}")
        a(f"v_lshlrev_b32 v{o}, 16, v{t}\nv_and_b32 v{o+1}, 0xffff0000, v{t}\nv_lshlrev_b32 v{o+2}, 16, v{t+1}\nv_and_b32 v{o+3}, 0xffff0000, v{t+1}")
        for i in range(4): a(f"v_mul_f32 v{c+i}, v15, v{c+i}")
        for i in range(4): a(f"v_fmac_f32 v{c+i}, v14, v{o+i}")
        a(f"v_cvt_pk_bf16_f32 v{r}, v{c}, v{c+1}\nv_cvt_pk_bf16_f32 v{r+1}, v{c+2}, v{c+3}")
        if p in (1, 3):
            r -= 2
            a(f"v_permlane16_swap_b32 v{r}, v{r+2}\nv_permlane16_swap_b32 v{r+1}, v{r+3}")
            a(f"buffer_store_dwordx4 {vr(r,4)}, v5, {srd(SOUT)}, s75 offen offset:{(p>>1)*64}")
        if p == 4: a(f"buffer_store_dwordx2 {vr(r,2)}, v4, {srd(SOUT)}, s75 offen offset:128")
    stamp(a, 12)

def sizes(lines):
    import subprocess, tempfile
    lab = [l[:-1] for l in lines if l.endswith(":")]
    src = ".amdgcn_target \"amdgcn-amd-amdhsa--gfx950\"\n.text\n" + "\n".join(lines) + "\n" + "".join(f"H_{n}{w}:\n" for n in "SL" for w in range(4)) + "s_endpgm\n"
    with tempfile.TemporaryDirectory() as d:
        open(d + "/a.s", "w").write(src)
        subprocess.run(["clang", "-x", "assembler", "-target", "amdgcn-amd-amdhsa", "-mcpu=gfx950", "-c", d + "/a.s", "-o", d + "/a.o"], check=True)
        out = subprocess.run(["llvm-objdump", "-d", d + "/a.o"], capture_output=True, text=True, check=True).stdout
    sz = [4 * len(l.split("//")[1].split(":")[1].split("<")[0].split()) for l in out.split("\n") if "//" in l]
    assert len(sz) == sum(not l.endswith(":") for l in lines) + 1
    return sz
BASE = 0x300
def place_stops(lines):
    if not cfg.hop: return [l for l in lines if not l.startswith(("R_", "L_STOP"))]
    sz = sizes(lines); out = []; stops = []; ad = BASE; reg = None; k = 0; nxt = None
    gran = {"P": 4096, "SH": cfg.gS, "SC": cfg.gS, "LH": cfg.gL, "LC": cfg.gL, "GC": cfg.gG, "GH": cfg.gG, "SK": cfg.gK, "SJ": cfg.gK}
    def put():
        nonlocal ad
        if stops and ad - stops[-1][1] < 256 and (ad >> 12) == (stops[-1][1] >> 12) and reg[0] == stops[-1][0][0]: return
        stops.append((reg, ad, len(out))); out.append(None); ad += 4
    for l in lines:
        if l.startswith("R_"): reg = l[2:-1]; nxt = (ad // gran[reg] + 1) * gran[reg]; continue
        if l.startswith("L_STOP"): put(); continue
        if l.endswith(":"): out.append(l); continue
        if ad >= nxt:
            put(); nxt = (ad // gran[reg] + 1) * gran[reg]
        out.append(l); ad += sz[k]; k += 1
    def first(regs):
        l = [s for s in stops if s[0] in regs]
        return sorted(l, key=lambda s: s[1] - min(t[1] for t in l if t[0] == s[0]))
    Sx = (first(("SK", "SJ")) + first(("SH", "SC")))[:cfg.nS]
    Lx = first(("LH", "LC"))[:cfg.nL]; G = first(("GH", "GC"))[:cfg.nG]
    nm = {s: f"H_s{i}" for i, s in enumerate(stops)}; tgt = {}; ent = {}
    for w in range(4):
        g = G[3 - w::4]
        for n, ch, end in (("G", g, "L_hret"), ("S", Sx[w::4], nm[g[0]] if g else "L_hret"), ("L", Lx[w::4], nm[g[0]] if g else "L_hret")):
            for i, s in enumerate(ch): tgt[s] = nm[ch[i + 1]] if i + 1 < len(ch) else end
            ent[f"H_{n}{w}"] = nm[ch[0]] if ch else end
    dead = [s for s in stops if s not in tgt]
    res = []
    at = {s[2]: s for s in stops}
    for i, l in enumerate(out):
        if l is None:
            s = at[i]
            if s in tgt: res += [nm[s] + ":", f"s_cbranch_execz {tgt[s]}"]
            else: res.append("s_nop 0")
        else:
            t = l.split()
            if len(t) == 2 and t[1] in ent: l = f"{t[0]} {ent[t[1]]}"
            res.append(l)
    if os.environ.get("V"): print("stops", [(r, hex(x)) for r, x, _ in stops], "dead", len(dead), "end", hex(ad))
    return res
def fin(a):
    if cfg.stamps: a("s_branch L_fin")
    else: a("s_endpgm")
def build():
    uid[0] = 0; pk[0] = 0
    a = S()
    prologue(a)
    if cfg.stamps == 2: stamp(a, 50)
    map2(a)
    a(f"s_cmp_eq_u32 s{sLARGE}, 1\ns_cbranch_scc1 L_help_large")
    region(a, "SJ")
    helper_g1(a, 3)
    region(a, "GH")
    helper_g2(a); fin(a)
    region(a, "SK")
    a.label("L_comp"); a.reset(); stop(a)
    if cfg.t2q == -3: t2_early(a)
    map2(a)
    a.seed(["par"] * 8 + ["t2"] * (4 if cfg.t2q < -1 else 0))
    t2_issue(a)
    g1_setup(a, 3)
    a.wvm("par")
    stamp(a, 17)
    hyb = cfg.kc < 100
    kg = S(); kgen(kg, None, t2_lds(), top=not hyb)
    if cfg.t2q >= 0: kg = interleave(t2_loads(), kg, len(kg) * cfg.t2q // 100, len(kg) * (cfg.t2q + 8) // 100)
    a.add(kg)
    if not hyb:
        a(f"v_add_u32 v3, s89, v{vL16}")
        for i in range(4): a(f"ds_write_b128 v3, {vr(KP+4*i,4)} offset:{1024*i}")
    if not cfg.t2w:
        for q, x in enumerate(t2_stores()):
            a.wlg(f"t2a{q}"); a(x)
    a("s_waitcnt lgkmcnt(0)")
    region(a, "SC")
    g1_loop(a, 3, "s", t2_stores() if cfg.t2w else ()); conv(a)
    region(a, "GC")
    gemm2_compute(a)
    if cfg.stamps:
        a.label("L_fin")
        a("s_waitcnt vmcnt(0)")
        stamp(a, 14); stamp_rt(a, 15)
        stamp_flush(a)
    a("s_endpgm")
    region(a, "LH")
    a.label("L_help_large"); a.reset(); stop(a)
    helper_g1(a, 4); a("s_branch L_help_g2")
    region(a, "LC")
    a.label("L_comp_large"); a.reset(); stop(a)
    map_ws(a); clear_stores(a); map2(a, False)
    g1_setup(a, 4); signal_cleared(a)
    g1_loop(a, 4, "l")
    hoff_setup(a)
    a(f"s_mov_b32 s79, {OOB}\ns_waitcnt vmcnt(0)")
    h_flag(a, 4)
    stamp(a, 6)
    spin(a, [HPOLL], T_EARLY)
    stamp(a, 16)
    for n in range(cfg.npre):
        for x in hload(n): a.unc(x)
    a("s_barrier")
    stamp(a, 7)
    g2_first(a)
    a("s_branch L_comp_g2")
    a.label("L_end")
    lines = place_stops(fix_hazards([l for l in resolve(a.ops) if l.strip()]))
    hdr = open(os.path.join(os.path.dirname(os.path.abspath(__file__)), "header.txt")).read()
    body = "\n".join(("" if l.endswith(":") else "    ") + l for l in lines)
    return (hdr + f"; @launch grid=(256,1,1) block=(512,1,1) lds={LDS_BYTES}\n"
            f".amdgcn_target \"amdgcn-amd-amdhsa--gfx950\"\n.text\n.globl {KN}\n.p2align 12\n.p2align 8\n.type {KN},@function\n{KN}:\n"
            + body + "\n    s_endpgm\n"
            f".section .rodata,\"a\"\n.p2align 6\n.amdhsa_kernel {KN}\n  .amdhsa_next_free_vgpr 256\n  .amdhsa_next_free_sgpr 102\n"
            "  .amdhsa_accum_offset 256\n  .amdhsa_group_segment_fixed_size 0\n  .amdhsa_kernarg_size 136\n  .amdhsa_user_sgpr_count 2\n"
            "  .amdhsa_user_sgpr_kernarg_segment_ptr 1\n  .amdhsa_system_sgpr_workgroup_id_x 1\n.end_amdhsa_kernel\n")

if __name__ == "__main__":
    out = sys.argv[1] if len(sys.argv) > 1 else "k.s"
    for x in sys.argv[2:]:
        if x == "stamps": cfg.stamps = 1
        elif x == "stamps2": cfg.stamps = 2
        elif x == "stamps3": cfg.stamps = 3
        elif "=" in x:
            k, v = x.split("="); setattr(cfg, k, int(v))
    open(out, "w").write(build())
    print("wrote", out)
```
